```python
import torch

def _softmax(x, axis=-1):
    return torch.softmax(x, dim=axis)

def _gelu(x):
    return torch.nn.functional.gelu(x, approximate='tanh')

def _silu(x):
    return torch.nn.functional.silu(x)

def _sigmoid(x):
    return torch.sigmoid(x)

def _layernorm(x, axis=-1, eps=1e-05):
    m = x.mean(dim=axis, keepdim=True)
    v = x.var(dim=axis, keepdim=True, unbiased=False)
    return (x - m) / torch.sqrt(v + eps)

def _scatter_add(tgt, idx, src, axis=0):
    return tgt.clone().index_add_(axis, idx, src)

def _segment_sum(src, seg, n):
    out = torch.zeros((n,) + src.shape[1:], dtype=src.dtype)
    return out.index_add_(0, seg, src)

def _pad(x, pw):
    flat = tuple((v for pair in reversed(pw) for v in pair))
    return torch.nn.functional.pad(x, flat)
kernel_name = 'adaLN_cond__sliding_block_cached__swiglu_ffn__prompt'

def setup_inputs():

    _w = lambda a: (lambda t: t.to(torch.bfloat16) if t.is_floating_point() else t)(torch.as_tensor(a))

    def _A_setup():
        B, Sq, D = (1, 2048, 1024)
        Hq, Hkv, Sk, Dh = (32, 4, 2048, 128)
        assert Hq % Hkv == 0, (Hq, Hkv)
        return {'x': _w((lambda *s: torch.randn(*s, dtype=torch.bfloat16) * 0.05)(B, Sq, D)), 'k_cache': _w((lambda *s: torch.randn(*s, dtype=torch.bfloat16) * 3.2)(B, Hkv, Sk, Dh)), 'v_cache': _w((lambda *s: torch.randn(*s, dtype=torch.bfloat16) * 0.4)(B, Hkv, Sk, Dh)), 'wq': _w((lambda *s: torch.randn(*s, dtype=torch.bfloat16) * 3.2)(D, Hq * Dh) * D ** (-0.5)), 'wo': _w((lambda *s: torch.randn(*s, dtype=torch.bfloat16) * 0.4)(Hq * Dh, D) * (Hq * Dh) ** (-0.5))}
    _A_in = _A_setup()

    def _B_setup():
        B, S, D, F = (1, 2048, 1024, 3584)
        return {'x': _w((lambda *s: torch.randn(*s, dtype=torch.bfloat16) * 0.05)(B, S, D)), 'w_gate': _w((lambda *s: torch.randn(*s, dtype=torch.bfloat16) * 0.05)(D, F)), 'w_up': _w((lambda *s: torch.randn(*s, dtype=torch.bfloat16) * 0.05)(D, F)), 'w_down': _w((lambda *s: torch.randn(*s, dtype=torch.bfloat16) * 0.05)(F, D))}
    _B_in = _B_setup()
    return {'A_x': _A_in['x'], 'A_k_cache': _A_in['k_cache'], 'A_v_cache': _A_in['v_cache'], 'A_wq': _A_in['wq'], 'A_wo': _A_in['wo'], 'B_x': _B_in['x'], 'B_w_gate': _B_in['w_gate'], 'B_w_up': _B_in['w_up'], 'B_w_down': _B_in['w_down'], 'c': _w((lambda *s: torch.randn(*s, dtype=torch.bfloat16) * 0.1)(1, 1024) * 8.0), 'w_mod': _w((lambda *s: torch.randn(*s, dtype=torch.bfloat16) * 0.1)(1024, 6 * 1024) * 1024 ** (-0.5) * 8.0)}

def reference(A_x, A_k_cache, A_v_cache, A_wq, A_wo, B_x, B_w_gate, B_w_up, B_w_down, c, w_mod):

    def _A_ref(x, k_cache, v_cache, wq, wo):
        B, Sq, D = x.shape
        Hq, Dh = (32, 128)
        Hkv, Sk = (k_cache.shape[1], k_cache.shape[2])
        W = min(4096, max(256, Sk // 4))
        rep = Hq // Hkv
        q = (lambda x, *d: x.permute(*d))((x @ wq).reshape(B, Sq, Hq, Dh), 0, 2, 1, 3)
        k = (lambda x, n, axis: torch.repeat_interleave(x, n, dim=axis))(k_cache[:, :, Sk - W:, :], rep, axis=1)
        v = (lambda x, n, axis: torch.repeat_interleave(x, n, dim=axis))(v_cache[:, :, Sk - W:, :], rep, axis=1)
        scores = torch.einsum('bhqd,bhkd->bhqk', q, k) * Dh ** (-0.5)
        p = _softmax(scores, axis=-1)
        o = torch.einsum('bhqk,bhkd->bhqd', p, v)
        return (lambda x, *d: x.permute(*d))(o, 0, 2, 1, 3).reshape(B, Sq, Hq * Dh) @ wo

    def _B_ref(x, w_gate, w_up, w_down):
        g = _silu(x @ w_gate)
        u = x @ w_up
        return g * u @ w_down
    x = A_x
    mod = (_silu(c) @ w_mod).reshape(c.shape[0], 6, 1, -1)
    sa, ca, ga, sb, cb, gb = (mod[:, 0].clone(), mod[:, 1].clone(), mod[:, 2].clone(), mod[:, 3].clone(), mod[:, 4].clone(), mod[:, 5].clone())
    h = _layernorm(x, axis=-1) * (1 + ca) + sa
    x = x + ga * _A_ref(h, A_k_cache, A_v_cache, A_wq, A_wo)
    h = _layernorm(x, axis=-1) * (1 + cb) + sb
    x = x + gb * _B_ref(h, B_w_gate, B_w_up, B_w_down)
    return x
```

```python
import re

def v(i): return f"v{i}"
def a(i): return f"a{i}"
def s(i): return f"s{i}"
def vr(i, n): return f"v[{i}:{i+n-1}]" if n > 1 else f"v{i}"
def ar(i, n): return f"a[{i}:{i+n-1}]" if n > 1 else f"a{i}"
def sr(i, n): return f"s[{i}:{i+n-1}]" if n > 1 else f"s{i}"

class R_:
    def __init__(self, f, base, n=1): self.f, self.base, self.n = f, base, n
    def __getitem__(self, i):
        if isinstance(i, slice):
            st = i.start or 0; en = i.stop if i.stop is not None else self.n
            assert 0 <= st < en <= self.n, (st, en, self.n)
            return R_(self.f, self.base + st, en - st)
        assert 0 <= i < self.n, (i, self.n)
        return R_(self.f, self.base + i, 1)
    def sub(self, off, n): return self[off:off + n]
    def __str__(self): return f"{self.f}[{self.base}:{self.base+self.n-1}]" if self.n > 1 else f"{self.f}{self.base}"
    __repr__ = __str__
    def __format__(self, spec): return str(self)

class Alloc:
    def __init__(self, f, start, limit): self.f, self.cur, self.limit, self.hi = f, start, limit, start
    def get(self, n=1, align=1):
        b = (self.cur + align - 1) // align * align
        self.cur = b + n
        assert self.cur <= self.limit, f"out of {self.f} regs: need {self.cur} > {self.limit}"
        self.hi = max(self.hi, self.cur)
        return R_(self.f, b, n)

class Ins:
    __slots__ = ("text", "kind", "tok", "wvm", "wlg", "site", "cls")
    def __init__(self, text, kind, tok=None, wvm=None, wlg=None):
        self.text, self.kind, self.tok, self.wvm, self.wlg = text, kind, tok, wvm, wlg
        self.site = None

def classify(text):
    op = text.split()[0]
    if op.endswith(":"): return "label"
    if op.startswith("v_mfma"): return "mfma"
    if op.startswith(("buffer_", "global_", "flat_")): return "vmem"
    if op.startswith("ds_"): return "ds"
    if op.startswith(("s_load", "s_buffer_load", "s_memtime", "s_memrealtime")): return "smem"
    if op == "s_waitcnt": return "wait"
    if op == "s_barrier": return "barrier"
    if op.startswith(("s_branch", "s_cbranch", "s_endpgm", "s_setpc", "s_swappc", "s_call")): return "branch"
    if op.startswith("s_"): return "salu"
    if op.startswith("v_"): return "valu"
    if op.startswith("."): return "dir"
    raise ValueError(text)

class Tok:
    def __init__(self, kind): self.kind = kind; self.idx = None

class Prog:
    def __init__(self):
        self.items = []
        self.cur = self.items
        self.loopsites = None
    def e(self, text, nocount=False):
        last = None
        for line in text.strip().split("\n"):
            line = line.strip()
            if not line or line.startswith(";"): continue
            k = classify(line)
            ins = Ins(line, k)
            if nocount and k in ("vmem", "ds"): ins.kind = "nc"
            elif k in ("vmem", "ds", "smem"):
                ins.tok = Tok(k)
                last = ins.tok
            self.cur.append(ins)
        return last
    def wait(self, vm=None, lg=None, vm0=False, lg0=False):
        ins = Ins("s_waitcnt", "wait")
        f = lambda t: [] if t is None else (list(t) if isinstance(t, (list, tuple)) else [t])
        ins.wvm = "all" if vm0 else f(vm)
        ins.wlg = "all" if lg0 else f(lg)
        self.cur.append(ins)
    def comment(self, t):
        ins = Ins("; " + t, "dir"); self.cur.append(ins)
    def loop(self, name, n_iter, body, counter, virt=None):
        iters = []
        saved = self.cur
        for it in range(n_iter):
            self.cur = []
            body(it)
            iters.append(self.cur)
        self.cur = saved
        self.cur.append(("loop", name, iters, counter))
    def flat(self):
        out = []
        for x in self.items:
            if isinstance(x, tuple):
                for it in x[2]: out.extend(it)
            else: out.append(x)
        return out
    def resolve(self):
        nvm = 0; nlg = 0
        smem_out = False
        for ins in self.flat():
            if ins.kind == "vmem":
                ins.tok.idx = nvm; nvm += 1
            elif ins.kind == "ds":
                ins.tok.idx = nlg; nlg += 1
            elif ins.kind == "smem":
                smem_out = True
            elif ins.kind == "wait" and ins.wvm is None and ins.wlg is None:
                if "lgkmcnt(0)" in ins.text: smem_out = False
            elif ins.kind == "wait" and (ins.wvm is not None or ins.wlg is not None):
                vmn = lgn = None
                if ins.wvm == "all": vmn = 0
                elif ins.wvm:
                    for t in ins.wvm: assert t.kind == "vmem" and t.idx is not None, "wait on a token not yet issued"
                    vmn = nvm - 1 - max(t.idx for t in ins.wvm)
                if ins.wlg == "all": lgn = 0; smem_out = False
                elif ins.wlg:
                    for t in ins.wlg: assert t.kind == "ds" and t.idx is not None
                    lgn = nlg - 1 - max(t.idx for t in ins.wlg)
                    assert not smem_out, "counted lgkm wait with SMEM outstanding"
                ins.wvm = vmn; ins.wlg = lgn
                ins.site = "resolved"
    def _wtext(self, vmn, lgn):
        parts = []
        if vmn is not None: parts.append(f"vmcnt({min(vmn,63)})")
        if lgn is not None: parts.append(f"lgkmcnt({min(lgn,15)})")
        return "s_waitcnt " + " ".join(parts) if parts else None
    def lines(self):
        self.resolve()
        out = []
        def one(ins):
            if ins.kind == "wait" and ins.site == "resolved":
                t = self._wtext(ins.wvm, ins.wlg)
                if t: out.append(t)
            else: out.append(ins.text)
        for x in self.items:
            if isinstance(x, tuple):
                _, name, iters, counter = x
                n = len(iters)
                L = len(iters[0])
                for it in iters: assert len(it) == L, f"loop {name}: iteration lengths differ"
                if n > 1:
                    out.append(f"s_mov_b32 {counter}, {n}")
                    out.append(f"{name}:")
                for p in range(L):
                    col = [it[p] for it in iters]
                    if col[0].kind == "wait" and col[0].site == "resolved":
                        vs = [c.wvm for c in col if c.wvm is not None]
                        ls = [c.wlg for c in col if c.wlg is not None]
                        t = self._wtext(min(vs) if vs else None, min(ls) if ls else None)
                        if t: out.append(t)
                    else:
                        for c in col: assert c.text == col[0].text, f"loop {name} pos {p}: {c.text!r} vs {col[0].text!r}"
                        out.append(col[0].text)
                if n > 1:
                    out.append(f"s_sub_u32 {counter}, {counter}, 1")
                    out.append(f"s_cmp_lg_u32 {counter}, 0")
                    out.append(f"s_cbranch_scc1 {name}")
            else: one(x)
        return out

_reg = re.compile(r"^(-|abs\(|neg\()?([vas])(\d+)\)?$|^(-|abs\(|neg\()?([vas])\[(\d+):(\d+)\]\)?$")
def regs_of(tok):
    tok = tok.strip()
    tok = re.sub(r"^\|(.*)\|$", r"\1", tok); tok = re.sub(r"^-\|(.*)\|$", r"\1", tok)
    m = _reg.match(tok)
    if m:
        if m.group(2): return {(m.group(2), int(m.group(3)))}
        return {(m.group(5), i) for i in range(int(m.group(6)), int(m.group(7)) + 1)}
    if tok == "vcc": return {("s", "vcc")}
    if tok in ("vcc_lo", "vcc_hi"): return {("s", "vcc")}
    if tok == "exec": return {("s", "exec")}
    if tok == "m0": return {("s", "m0")}
    return set()

TRANS = ("v_exp_f32", "v_log_f32", "v_rcp_f32", "v_rsq_f32", "v_sqrt_f32", "v_sin_f32", "v_cos_f32")
def rw(text):
    k = classify(text)
    body = text.split(";")[0].strip()
    parts = body.split(None, 1)
    op = parts[0]
    ops = [x.strip() for x in parts[1].split(",")] if len(parts) > 1 else []
    if ops:
        ops[-1:] = ops[-1].split()[:1] + [] if k not in ("vmem", "ds") else [ops[-1]]
    W, Rd = set(), set()
    info = {"op": op}
    base = re.sub(r"_(e32|e64|dpp|sdwa)$", "", op)
    if k == "mfma":
        W |= regs_of(ops[0]); info["A"] = regs_of(ops[1]); info["B"] = regs_of(ops[2]); info["C"] = regs_of(ops[3]); info["D"] = set(W)
        Rd |= info["A"] | info["B"] | info["C"]
        info["passes"] = 8 if "32x32" in op else 4
    elif k == "valu":
        if base.startswith("v_cmp"):
            W |= regs_of(ops[0]); [Rd.update(regs_of(x)) for x in ops[1:]]
            if base.startswith("v_cmpx"): W.add(("s", "exec"))
        elif base in ("v_add_co_u32", "v_sub_co_u32", "v_addc_co_u32", "v_subb_co_u32", "v_subrev_co_u32"):
            W |= regs_of(ops[0]) | regs_of(ops[1]); [Rd.update(regs_of(x)) for x in ops[2:]]
        elif base == "v_swap_b32":
            W |= regs_of(ops[0]) | regs_of(ops[1]); Rd |= W
        elif base.startswith("v_permlane") and "swap" in base:
            W |= regs_of(ops[0]) | regs_of(ops[1]); Rd |= W
            info["permlane"] = True
        else:
            W |= regs_of(ops[0]); [Rd.update(regs_of(x)) for x in ops[1:]]
            if base in ("v_fmac_f32", "v_mac_f32", "v_pk_fmac_f16", "v_dot2c_f32_bf16", "v_writelane_b32"): Rd |= regs_of(ops[0])
            if base == "v_cndmask_b32" and len(ops) == 3: Rd.add(("s", "vcc"))
            if base in ("v_div_fmas_f32",): Rd.add(("s", "vcc"))
        if base in TRANS: info["trans"] = True
        if "dpp" in text or "row_" in text or "quad_perm" in text: info["dpp"] = True
        if base in ("v_readfirstlane_b32", "v_readlane_b32"): info["readlane"] = True
    elif k == "vmem":
        toks = body.split(None, 1)[1]
        fields = [x.strip() for x in toks.split(",")]
        last = fields[-1].split()
        fields[-1] = last[0]; mods = last[1:]
        lds = "lds" in mods
        if op.startswith("buffer_load"):
            if lds:
                for x in fields: Rd |= regs_of(x)
                Rd.add(("s", "m0")); info["ldsdma"] = True
            else:
                W |= regs_of(fields[0])
                for x in fields[1:]: Rd |= regs_of(x)
        elif op.startswith("buffer_store") or op.startswith("buffer_atomic"):
            for x in fields: Rd |= regs_of(x)
            info["sdata"] = regs_of(fields[0]); info["wide"] = ("x3" in op or "x4" in op)
        elif op.startswith("global_load_lds"):
            for x in fields: Rd |= regs_of(x)
            Rd.add(("s", "m0")); info["ldsdma"] = True
        elif op.startswith("global_load"):
            W |= regs_of(fields[0])
            for x in fields[1:]: Rd |= regs_of(x)
        elif op.startswith("global_store") or op.startswith("global_atomic"):
            for x in fields: Rd |= regs_of(x)
            info["sdata"] = regs_of(fields[1]); info["wide"] = ("x3" in op or "x4" in op)
        elif op.startswith("buffer_inv") or op.startswith("buffer_wbl2"): pass
        else: raise ValueError(text)
    elif k == "ds":
        toks = body.split(None, 1)[1]
        fields = [x.strip() for x in toks.split(",")]
        fields[-1] = fields[-1].split()[0]
        if op.startswith("ds_read") or op.startswith("ds_bpermute") or op.startswith("ds_permute") or op.startswith("ds_swizzle"):
            W |= regs_of(fields[0])
            for x in fields[1:]: Rd |= regs_of(x)
        else:
            for x in fields: Rd |= regs_of(x)
            info["dsdata"] = True
    elif k in ("salu", "smem"):
        if base.startswith(("s_cmp", "s_bitcmp", "s_nop", "s_setprio", "s_sleep", "s_sendmsg")):
            for x in ops: Rd |= regs_of(x)
        else:
            if ops: W |= regs_of(ops[0])
            for x in ops[1:]: Rd |= regs_of(x)
            if "saveexec" in base: W.add(("s", "exec")); Rd.add(("s", "exec"))
    return k, W, Rd, info

def nstates(text):
    op = text.split()[0]
    if op == "s_nop": return int(text.split()[1], 0) + 1
    return 1

def need(prod, cons):
    pk, pW, pR, pi = prod; ck, cW, cR, ci = cons
    n = 0
    isv = lambda S: {x for x in S if x[0] in ("v", "a")}
    iss = lambda S: {x for x in S if x[0] == "s"}
    if pk == "valu":
        if ck == "mfma" and isv(pW) & cR: n = max(n, 2)
        if ck == "mfma" and ("s", "exec") in pW: n = max(n, 4)
        if pi.get("trans") and ck == "valu" and not ci.get("trans") and pW & cR: n = max(n, 1)
        if pi.get("trans") and ck == "valu" and ci.get("trans") and pW & cR: n = max(n, 1)
        if ck == "vmem" and iss(pW) & cR: n = max(n, 5)
        if ck == "valu" and iss(pW) & cR:
            n = max(n, 4 if (ci.get("readlane") or ci["op"].startswith(("v_writelane", "v_div_fmas"))) else 2)
        if ck == "valu" and ci.get("readlane") and isv(pW) & cR: n = max(n, 1)
        if ck == "valu" and ci.get("permlane") and isv(pW) & cR: n = max(n, 2)
        if ck == "valu" and ci.get("dpp") and isv(pW) & cR: n = max(n, 2)
        if ck == "valu" and ci.get("dpp") and ("s", "exec") in pW: n = max(n, 5)
        if ck == "valu" and ("s", "exec") in pW and (ci.get("readlane") or ci.get("permlane")): n = max(n, 4)
        if ck == "branch" and ci.get("op", "") in ("s_cbranch_vccz", "s_cbranch_vccnz", "s_cbranch_execz", "s_cbranch_execnz") and (("s", "vcc") in pW or ("s", "exec") in pW): n = max(n, 5)
        if ck == "salu" and iss(pW) & cR: n = max(n, 1)
    if pk == "mfma":
        P = pi["passes"]
        D = pi["D"]
        if ck == "mfma":
            if D & (ci["A"] | ci["B"]): n = max(n, P + 4)
            if D & ci["C"]:
                if not (ci["C"] == D and ci["passes"] == P): n = max(n, P + 2)
            if D & ci["D"] and not (ci["D"] == D): n = max(n, P + 2)
        elif ck == "valu":
            if D & (cR | cW): n = max(n, P + 4)
            if pi["C"] & cW: n = max(n, P - 1)
        elif ck in ("vmem", "ds"):
            if D & (cR | cW): n = max(n, P + 4)
    if pk == "salu" and ("s", "m0") in pW and ci.get("ldsdma"): n = max(n, 1)
    if pk == "vmem" and pi.get("wide") and pi.get("sdata"):
        if ck == "valu" and pi["sdata"] & cW: n = max(n, 2)
        elif pi["sdata"] & cW: n = max(n, 1)
    return n

_pcache = {}
def _parse(t):
    if t in _pcache: return _pcache[t]
    r = None
    if not (t.startswith(";") or t.startswith(".")):
        k = classify(t)
        if k == "label": r = None
        elif k in ("wait", "barrier", "branch"): r = (k, set(), set(), {"op": t.split()[0]})
        else: r = rw(t)
    _pcache[t] = r
    return r

def fix_hazards(lines, verbose=False):
    WIN = 20
    lines = list(lines)
    P = [_parse(t) for t in lines]
    pre = [0] * len(lines)
    islabel = [t.endswith(":") and not t.startswith(";") for t in lines]
    labels = {t[:-1]: i for i, t in enumerate(lines) if islabel[i]}
    jumps = {}
    for i, t in enumerate(lines):
        if P[i] and P[i][0] == "branch":
            sp = t.split()
            tgt = sp[-1]
            if len(sp) > 1 and tgt in labels: jumps.setdefault(labels[tgt], []).append(i)
    total = 0
    for rnd in range(2):
        for i, t in enumerate(lines):
            c = P[i]
            if c is None or c[0] in ("wait", "barrier"): continue
            worst = 0
            stack = [(i - 1, pre[i], False)]
            seen = set()
            while stack:
                j, dist, viajump = stack.pop()
                while j >= 0 and dist < WIN:
                    if islabel[j]:
                        for src in jumps.get(j, []):
                            if (src, dist) not in seen:
                                seen.add((src, dist)); stack.append((src, dist, True))
                        j -= 1; viajump = False; continue
                    p = P[j]
                    if p is None: j -= 1; continue
                    if p[0] == "branch" and p[3]["op"] in ("s_branch", "s_endpgm", "s_setpc_b64") and not viajump: break
                    viajump = False
                    if p[0] not in ("wait", "barrier", "branch"):
                        n = need(p, c)
                        if n > dist:
                            worst = max(worst, n - dist)
                            if verbose: print(f"hazard: [{lines[j]}] -> [{t}] need {n} have {dist}")
                    dist += nstates(lines[j]) + pre[j]
                    j -= 1
            if worst > 0:
                pre[i] += worst; total += 1
    out = []
    for i, t in enumerate(lines):
        k = pre[i]
        while k > 0:
            x = min(k, 16); out.append(f"s_nop {x-1}"); k -= x
        out.append(t)
    return out, total

def kernel_text(name, lines, vgprs, agprs, sgprs, accum=None):
    acc_off = accum if accum is not None else max(4, (vgprs + 3) // 4 * 4)
    nfv = acc_off + agprs if agprs else vgprs
    body = [f".globl {name}", ".p2align 8", f".type {name},@function", f"{name}:"] + ["  " + l if not l.endswith(":") else l for l in lines]
    kd = [f'.amdhsa_kernel {name}', f'  .amdhsa_next_free_vgpr {nfv}', f'  .amdhsa_next_free_sgpr {sgprs}', f'  .amdhsa_accum_offset {acc_off}',
          '  .amdhsa_group_segment_fixed_size 0', '  .amdhsa_kernarg_size 112', '  .amdhsa_user_sgpr_count 2',
          '  .amdhsa_user_sgpr_kernarg_segment_ptr 1', '  .amdhsa_system_sgpr_workgroup_id_x 1',
          '  .amdhsa_float_denorm_mode_32 3', '  .amdhsa_float_denorm_mode_16_64 3', '  .amdhsa_ieee_mode 0', '  .amdhsa_dx10_clamp 0', '.end_amdhsa_kernel']
    return body, kd

def interleave(P, mf, fill):
    def do(x):
        if callable(x): x()
        else: P.e(x)
    for x in fill.get(-1, []): do(x)
    for i, m in enumerate(mf):
        do(m)
        for x in fill.get(i, []): do(x)
R = R_


def spread(P, mf, streams, pre=(), mid=None):
    def do(x):
        if callable(x): x()
        else: P.e(x)
    for x in pre: do(x)
    nm = len(mf)
    allf = []
    for si, st in enumerate(streams):
        last = -1e9
        for k, (pos, x) in enumerate(st):
            pos = max(pos, last); last = pos
            allf.append((pos, si, k, x))
    allf.sort(key=lambda t: (t[0], t[1], t[2]))
    F = len(allf)
    gaps = [[] for _ in range(nm)]
    if F >= nm:
        for k, t in enumerate(allf): gaps[(k * nm) // F].append(t[3])
    else:
        nxt = 0
        for k, t in enumerate(allf):
            g = max(nxt, min(nm - 1, int(t[0])))
            g = min(g, nm - (F - k))
            g = max(g, nxt)
            gaps[g].append(t[3]); nxt = g + 1
    for i, m in enumerate(mf):
        if mid and i in mid:
            for x in mid[i]: do(x)
        do(m)
        for x in gaps[i]: do(x)

def check_m0(lines):
    fresh = 0
    for t in lines:
        if t.endswith(":"): continue
        if t.split()[0].startswith("s_") and " m0," in t + ",":
            if t.split()[1].startswith("m0"):
                assert fresh == 0, "m0 written twice without a DMA: " + t
                fresh = 1
        if t.endswith(" lds") or " lds " in t:
            assert fresh == 1, "DMA without fresh m0: " + t
            fresh = 0
```

```python
import sys
from asmlib import *
def assemble(kernels, grids, header=""):
    out = []
    if header: out.append(header)
    lds = {k[0]: k[5] for k in kernels}
    for name, g, b in grids:
        out.append(f"; @launch kernel={name} grid=({g},1,1) block=({b},1,1) lds={lds[name]}")
    out.append('.amdgcn_target "amdgcn-amd-amdhsa--gfx950"')
    out.append(".text")
    kds = []
    for name, lines, vg, ag, sg, _ in kernels:
        body, kd = kernel_text(name, lines, vg, ag, sg)
        out += body; kds.append(kd)
    out.append('.section .rodata,"a"')
    for kd in kds:
        out.append(".p2align 6"); out += kd
    return "\n".join(out) + "\n"
```

```python
from kcommon import *

class GemmCore:
    def __init__(self, P, name, MT, NT, NST, NS, R, acc, ring, wf, ndma, dma_fn, act_fn, tr_fn, scnt, U=4,
                 ramp_cap=None, LA=None, ld_span=1.0, wgroup=1, SPS=2, dma_pre=None, act_pre=None, act_needs_pre=None):
        self.__dict__.update(locals()); del self.self
        self.AH = R - 1
        self.RF = len(wf)
        if LA is None: self.LA = self.RF - 1
        assert self.LA < self.RF and (SPS * NT * U) % self.RF == 0 and (SPS * U) % R == 0 and U % NS == 0, (SPS, NT, U, self.RF, R, NS)
        self.dma_tok = {}; self.act_tok = {}; self.wf_tok = {}
        self.na = 0; self.nd = 0
        self.nG = SPS * NST
        self.bar_done = set()
    def act_changes(self):
        g = self.na // self.MT
        return self.act_needs_pre(g, self.na % self.MT)
    def adv(self, kind):
        if kind == "a": self.na += 1
        else: self.nd += 1
    def rewind(self, loads):
        self.na -= loads.count("a"); self.nd -= loads.count("d")
    def pre_act(self):
        g, m = divmod(self.na, self.MT); self.act_pre(g, m)
    def pre_dma(self):
        s_, i = divmod(self.nd, self.ndma); self.dma_pre(s_, i)
    def issue_act(self):
        g, m = divmod(self.na, self.MT); self.na += 1
        self.act_tok.setdefault(g, []).append(self.act_fn(g, m))
    def issue_dma(self):
        s_, i = divmod(self.nd, self.ndma); self.nd += 1
        self.dma_tok.setdefault(s_, []).append(self.dma_fn(s_, i))
    def trread(self, f, rd):
        G, T = divmod(f, self.NT)
        self.wf_tok.setdefault(f, []).append(self.tr_fn(G, T, rd, self.wf[f % self.RF].sub(2 * rd, 2)))
    def barrier_for(self, stage):
        self.P.wait(vm=self.dma_tok[stage]); self.P.e("s_barrier")
    def plan(self, G, cap):
        SPS = self.SPS
        s_, q = divmod(G, SPS)
        na, nd = self.na, self.nd
        a_lim = (G + self.AH + 1) * self.MT
        d_lim = (s_ + self.NS - 2) * self.ndma + -(-self.ndma * (q + 1) // SPS)
        a_lim = min(a_lim, self.nG * self.MT); d_lim = min(d_lim, self.NST * self.ndma)
        out = []
        while len(out) < cap and (na < a_lim or nd < d_lim):
            da = na // self.MT if na < a_lim else 1 << 30
            dd = SPS * (nd // self.ndma) - 1 if nd < d_lim else 1 << 30
            if dd <= da: out.append("d"); nd += 1
            else: out.append("a"); na += 1
        return out
    def prologue_loads(self, n_act_steps=1, n_dma_stages=1):
        for _ in range(self.ndma * n_dma_stages): self.pre_dma(); self.P.e("s_nop 0"); self.issue_dma()
        for _ in range(self.MT * n_act_steps):
            if self.act_changes(): self.pre_act()
            self.issue_act()
    def start(self):
        self.barrier_for(0)
        for f in range(self.LA):
            self.trread(f, 0); self.trread(f, 1)
    def step(self, G, cap=None, extra=None, noloads=False):
        P = self.P; SPS = self.SPS
        NT, MT = self.NT, self.MT
        mf = []; mid = {}
        nf_total = self.nG * NT
        rd_st = []
        for T in range(NT):
            f = G * NT + T
            ms = range(MT) if T % 2 == 0 else range(MT - 1, -1, -1)
            base = len(mf)
            pre = []
            if T == 0: pre.append(lambda: P.wait(vm=self.act_tok[G]))
            if T % self.wgroup == 0:
                fl = min(f + self.wgroup - 1, G * NT + NT - 1)
                pre.append(lambda fl=fl: P.wait(lg=self.wf_tok[fl]))
            fn = f + self.LA
            if fn < nf_total:
                if fn % (SPS * NT) == 0:
                    pre.append(lambda st=fn // (SPS * NT): self.barrier_for(st))
                rd_st.append((base, lambda fn=fn: self.trread(fn, 0)))
                rd_st.append((base + MT / 2, lambda fn=fn: self.trread(fn, 1)))
            mid[base] = pre
            for m in ms:
                mf.append(f"v_mfma_f32_16x16x32_bf16 {self.acc[m][T]}, {self.wf[f % self.RF]}, {self.ring[G % self.R][m]}, {self.acc[m][T]}")
        nm = len(mf)
        ld_st = []
        loads = self.plan(G, cap if cap is not None else 1 << 30) if not noloads else []
        n = len(loads)
        for i, kind in enumerate(loads):
            pos = max(0, min(nm - 2, ((2 * i + 1) * nm * self.ld_span) / (2 * n) - 1))
            if kind == "a":
                if self.act_changes(): ld_st.append((pos, self.pre_act))
                ld_st.append((pos, self.issue_act))
            else:
                ld_st.append((pos, self.pre_dma)); ld_st.append((pos + 1, self.issue_dma))
            self.adv(kind)
        self.rewind(loads)
        extra = extra or getattr(self, 'extras', {}).get(G, [])
        self._emit(mf, mid, rd_st, ld_st, extra)
    def _emit(self, mf, mid, rd_st, ld_st, extra):
        P = self.P
        nm = len(mf)
        gaps = [[] for _ in range(nm)]
        for pos, x in rd_st: gaps[min(nm - 1, int(pos))].append(x)
        for st in (ld_st, extra):
            lo = 0
            for pos, x in st:
                g = max(lo, min(nm - 1, int(pos)))
                cand = list(range(g, min(nm, g + 3)))
                h = min(cand, key=lambda t: (len(gaps[t]), t))
                gaps[h].append(x); lo = h
        do = lambda x: x() if callable(x) else P.e(x)
        for i, m in enumerate(mf):
            for x in mid.get(i, []): do(x)
            do(m)
            for x in gaps[i]: do(x)
    def run(self, P1=None):
        P = self.P; U = self.U; SPS = self.SPS
        P1 = U if P1 is None else P1
        for G in range(0, SPS * P1): self.step(G, cap=self.ramp_cap)
        while self.plan(SPS * P1 - 1, 1 << 30):
            for G in range(SPS * P1, SPS * (P1 + 1)): self.step(G, cap=self.ramp_cap)
            P1 += 1
        if getattr(self, "after_peel", None): self.after_peel()
        nloop = (self.NST - P1 - 1) // U
        def body(it):
            for G in range(SPS * (P1 + U * it), SPS * (P1 + U * (it + 1))): self.step(G)
        if nloop > 0:
            P.loop(f"L_loop_{self.name}", nloop, body, self.scnt)
        for G in range(SPS * (P1 + U * nloop), self.nG): self.step(G)
```

```python
from gemm_core import *

QBIAS = 64.0

def gen_attn(ts=False, name="attn_kernel", ramp_cap=10, kidx=2):
    P = Prog()
    MT = 4; NT = 8; K = 1024; NST = 16; NS = 4; R = 4; RF = 8
    STG = 16 * 1056
    KSL = 16 * 1040; VSL = 16 * 1056
    K_BASE = 0; W_BASE = 4 * KSL; V_BASE = W_BASE
    LDS_BYTES = W_BASE + 4 * STG
    WROW = 8192
    sa = Alloc("s", 4, 96)
    va = Alloc("v", 1, 32)
    vlane = va.get(); vtmp = va.get(4, 2); vdW = va.get(); vtrW = va.get(); vact = va.get(2); vdKV = va.get(); vkr = va.get(2); vvr = va.get(2)
    vor = va.get(); et = va.get(8, 4); vst = va.get(); vx = va.get(4, 2)
    negm = [R_("v", 32 + 4 * m, 4) for m in range(4)]
    ones = R_("v", 48, 4)
    S = [[[R_("v", 64 + b * 64 + (kt * 4 + m) * 4, 4) for m in range(4)] for kt in range(4)] for b in range(2)]
    Pb = [[[R_("v", 192 + b * 32 + (ks * 4 + m) * 4, 4) for m in range(4)] for ks in range(2)] for b in range(2)]
    qacc = [[R_("v", 64 + (m * NT + T) * 4, 4) for T in range(NT)] for m in range(MT)]
    O = [[R_("a", (dt * 4 + m) * 4, 4) for m in range(4)] for dt in range(8)]
    Q = [[R_("a", 128 + (m * 4 + s_) * 4, 4) for s_ in range(4)] for m in range(4)]
    lac = [R_("a", 192 + 4 * m, 4) for m in range(4)]
    kfr = [R_("a", 208 + 4 * i, 4) for i in range(4)]
    vfr = [R_("a", 224 + 4 * i, 4) for i in range(8)]
    ring = [[R_("a", 128 + (r * MT + m) * 4, 4) for m in range(MT)] for r in range(R)]
    wf = [R_("a", 192 + 4 * i, 4) for i in range(RF)]
    pw = sa.get(2, 2); pk = sa.get(2, 2); pv = sa.get(2, 2); pws = sa.get(2, 2)
    srdW = sa.get(4, 4); srdA = sa.get(4, 4); srdK = sa.get(4, 4); srdV = sa.get(4, 4); srdO = sa.get(4, 4)
    swave = sa.get(); srbk = sa.get(); shead = sa.get(); sWoff = sa.get(); sAoff = sa.get(); sLdsW = sa.get(); sLdsK = sa.get(); sLdsV = sa.get()
    sKoff = sa.get(); sVoff = sa.get(); sKs = sa.get(); sVs = sa.get(); sKm = sa.get(); sVm = sa.get(); scnt = sa.get(); st0 = sa.get(); st1 = sa.get(); sret = sa.get(2, 2)
    T_ = TS(P, sa, kidx, ts, n=14)
    P.e(f"s_cmp_ge_u32 s2, 256\ns_cbranch_scc1 L_end_{name}")
    T_.stamp(real=True); T_.stamp()
    load_ptr(P, pw, "wq"); load_ptr(P, pk, "kc"); load_ptr(P, pv, "vc"); load_ptr(P, pws, "ws")
    P.e(f"v_lshrrev_b32 {vtmp[0]}, 6, v0\nv_and_b32 {vlane}, 63, v0\ns_nop 0\nv_readfirstlane_b32 {swave}, {vtmp[0]}")
    P.e(f"s_lshr_b32 {st0}, s2, 3\ns_and_b32 {srbk}, {st0}, 7\ns_lshr_b32 {st0}, {st0}, 3\ns_and_b32 {shead}, s2, 7\ns_lshl_b32 {shead}, {shead}, 2\ns_add_u32 {shead}, {shead}, {st0}")
    P.e(f"v_lshrrev_b32 {vtmp[0]}, 4, {vlane}\nv_mul_u32_u24 {vtmp[1]}, {16*WROW}, {vtmp[0]}\nv_and_b32 {vtmp[2]}, 15, {vlane}\nv_lshlrev_b32 {vtmp[2]}, 4, {vtmp[2]}")
    P.e(f"s_lshl_b32 {st0}, {shead}, 8\nv_add3_u32 {vdW}, {vtmp[1]}, {vtmp[2]}, {st0}")
    P.e(f"v_lshlrev_b32 {vtmp[1]}, 12, {vtmp[0]}\nv_add_u32 {vdKV}, {vtmp[1]}, {vtmp[2]}")
    P.e(f"s_mul_i32 {sWoff}, {swave}, {4*WROW}\ns_mul_i32 {sLdsW}, {swave}, {4*1056}\ns_add_u32 {sLdsW}, {sLdsW}, {W_BASE}")
    P.e(f"s_mul_i32 {sLdsK}, {swave}, {4*1040}\ns_mul_i32 {sLdsV}, {swave}, {4*1056}\ns_add_u32 {sLdsV}, {sLdsV}, {V_BASE}")
    P.e(f"s_lshr_b32 {st0}, {shead}, 3\ns_lshl_b32 {st0}, {st0}, 11\ns_lshl_b32 {st1}, {swave}, 2\ns_add_u32 {st0}, {st0}, {st1}\ns_add_u32 {st0}, {st0}, 1536\ns_lshl_b32 {sKoff}, {st0}, 8\ns_mov_b32 {sVoff}, {sKoff}")
    P.e(f"v_lshrrev_b32 {vtmp[0]}, 2, {vlane}\nv_mul_u32_u24 {vtrW}, 1056, {vtmp[0]}\nv_and_b32 {vtmp[0]}, 3, {vlane}\nv_lshlrev_b32 {vtmp[0]}, 3, {vtmp[0]}")
    P.e(f"v_add3_u32 {vtrW}, {vtrW}, {vtmp[0]}, v0\nv_sub_u32 {vtrW}, {vtrW}, v0\nv_add_u32 {vtrW}, {W_BASE}, {vtrW}\nv_mov_b32 {vvr[0]}, {vtrW}\nv_add_u32 {vvr[1]}, {2*VSL}, {vtrW}")
    P.e(f"v_and_b32 {vtmp[0]}, 15, {vlane}\nv_mul_u32_u24 {vkr[1]}, 1040, {vtmp[0]}\nv_lshrrev_b32 {vtmp[0]}, 4, {vlane}\nv_lshlrev_b32 {vtmp[0]}, 3, {vtmp[0]}\nv_add_u32 {vkr[1]}, {vkr[1]}, {vtmp[0]}\nv_add_u32 {vkr[0]}, {2*KSL}, {vkr[1]}")
    P.e(f"s_lshl_b32 {st0}, {srbk}, 4\ns_lshl_b32 {st1}, {swave}, 2\ns_add_u32 {st0}, {st0}, {st1}\ns_lshl_b32 {st0}, {st0}, 11")
    P.e(f"v_lshlrev_b32 {vact[0]}, 4, {vlane}\nv_add_u32 {vact[0]}, {st0}, {vact[0]}\nv_add_u32 {vact[1]}, 4096, {vact[0]}")
    P.e("s_waitcnt lgkmcnt(0)")
    T_.stamp()
    make_srd(P, srdW, pw, K * WROW)
    make_srd(P, srdA, pws, 2048 * 1024 * 2, WS_H)
    make_srd(P, srdK, pk, 4 * 2048 * 256)
    make_srd(P, srdV, pv, 4 * 2048 * 256)
    P.e(f"s_lshr_b32 {st0}, {shead}, 3\ns_add_u32 {st0}, {st0}, 1\ns_lshl_b32 {srdK[2]}, {st0}, 19\ns_mov_b32 {srdV[2]}, {srdK[2]}")
    make_srd(P, srdO, pws, 2048 * 4096 * 2, WS_O)
    P.e(f"s_mov_b32 {sAoff}, 0")
    def dma_pre(stage, i):
        if stage > 0 or i > 0: P.e(f"s_add_u32 {sWoff}, {sWoff}, {WROW if i > 0 else (64 - 4 + 1)*WROW}")
        P.e(f"s_add_u32 m0, {sLdsW}, {(stage % NS)*STG + i*1056}")
    def dma_fn(stage, i): return P.e(f"buffer_load_dwordx4 {vdW}, {srdW}, {sWoff} offen lds")
    act_needs_pre = lambda g, m: m == 0 and g > 0 and (g & 1) == 0
    def act_pre(g, m): P.e(f"s_add_u32 {sAoff}, {sAoff}, 262144")
    def act_fn(g, m):
        return P.e(f"buffer_load_dwordx4 {ring[g % R][m]}, {vact[m >> 1]}, {srdA}, {sAoff} offen offset:{(m & 1)*2048 + (g & 1)*1024}")
    def tr_fn(G, T, rd, dst):
        stage, q = divmod(G, 2); slot = stage % NS
        off = slot * STG + (2 * q + rd) * 256 + 32 * T
        return P.e(f"ds_read_b64_tr_b16 {dst}, {vtrW} offset:{off}")
    ktok = {}; vtok = {}
    def kdma_pre(c, i):
        if c > 0 or i > 0: P.e(f"s_add_u32 {sKoff}, {sKoff}, {256 if i > 0 else (64 - 3)*256}")
        if i == 0 and c > 0:
            P.e(f"s_add_u32 {sKs}, {sKs}, {KSL}\ns_cmp_eq_u32 {sKs}, {4*KSL}\ns_cselect_b32 {sKs}, 0, {sKs}\ns_add_u32 {sKm}, {sKs}, {sLdsK}")
        P.e(f"s_add_u32 m0, {sKm}, {i*1040}")
    def kdma(c, i): ktok.setdefault(c, []).append(P.e(f"buffer_load_dwordx4 {vdKV}, {srdK}, {sKoff} offen lds"))
    def vdma_pre(c, i):
        if c > 0 or i > 0: P.e(f"s_add_u32 {sVoff}, {sVoff}, {256 if i > 0 else (64 - 3)*256}")
        if i == 0 and c > 0:
            P.e(f"s_add_u32 {sVs}, {sVs}, {VSL}\ns_cmp_eq_u32 {sVs}, {4*VSL}\ns_cselect_b32 {sVs}, 0, {sVs}\ns_add_u32 {sVm}, {sVs}, {sLdsV}")
        P.e(f"s_add_u32 m0, {sVm}, {i*1056}")
    def vdma(c, i): vtok.setdefault(c, []).append(P.e(f"buffer_load_dwordx4 {vdKV}, {srdV}, {sVoff} offen lds"))
    P.e(f"s_mov_b32 {sKs}, 0\ns_mov_b32 {sVs}, 0\ns_mov_b32 {sKm}, {sLdsK}\ns_mov_b32 {sVm}, {sLdsV}")
    pair = {"k": 1, "v": 0}

    C = GemmCore(P, name + "_q", MT, NT, NST, NS, R, qacc, ring, wf, 4, dma_fn, act_fn, tr_fn, scnt, U=4, ramp_cap=ramp_cap,
                 dma_pre=dma_pre, act_pre=act_pre, act_needs_pre=act_needs_pre)
    C.prologue_loads(n_act_steps=1, n_dma_stages=1)
    T_.stamp()
    for m in range(MT):
        for T in range(NT):
            for r in range(4): P.e(f"v_mov_b32 {qacc[m][T][r]}, 0")
    C.start()
    T_.stamp()
    extras = {}
    zl = [f"v_accvgpr_write_b32 {O[dt][m][r]}, 0" for dt in range(8) for m in range(4) for r in range(4)]
    tailG = list(range(24, 32))
    for k_, G in enumerate(tailG):
        ex = []
        for j, z in enumerate(zl[16 * k_:16 * k_ + 16]): ex.append((2 * j, z))
        extras[G] = ex
    for c in range(4):
        G = 24 + 2 * c
        for i in range(4):
            extras[G].append((4 + 7 * i, (lambda c=c, i=i: kdma_pre(c, i)))); extras[G].append((5 + 7 * i, (lambda c=c, i=i: kdma(c, i))))
        extras[G].sort(key=lambda t: t[0])
    C.extras = extras
    C.run()
    T_.stamp()
    for m in range(4):
        for s_ in range(4):
            for hf in range(2):
                A = qacc[m][2 * s_ + hf]
                P.e(f"v_cvt_pk_bf16_f32 {et[2*hf]}, {A[0]}, {A[1]}\nv_cvt_pk_bf16_f32 {et[2*hf+1]}, {A[2]}, {A[3]}")
            for j in range(4): P.e(f"v_accvgpr_write_b32 {Q[m][s_][j]}, {et[j]}")
    for m in range(4):
        for r in range(4):
            P.e(f"v_mov_b32 {negm[m][r]}, 0\nv_accvgpr_write_b32 {lac[m][r]}, 0")
    for r in range(4): P.e(f"v_mov_b32 {ones[r]}, 0x3f803f80")
    P.wait(vm=ktok[0] + ktok[1], lg0=True); P.e("s_barrier")
    T_.stamp()

    kf_tok = {}; vf_tok = {}
    def kread(c, f, p):
        kt, s_ = divmod(f, 4)
        off = (c & 1) * KSL + kt * 256 + 64 * s_ + 32 * p
        reg = vkr[0] if ((c >> 1) & 1) == pair["k"] else vkr[1]
        kf_tok.setdefault((c, f), []).append(P.e(f"ds_read_b64 {kfr[f % 4].sub(2*p, 2)}, {reg} offset:{off}"))
    def vread(c, f, rd):
        ks, dt = divmod(f, 8)
        off = (c & 1) * VSL + (2 * ks + rd) * 256 + 32 * dt
        reg = vvr[0] if ((c >> 1) & 1) == pair["v"] else vvr[1]
        vf_tok.setdefault((c, f), []).append(P.e(f"ds_read_b64_tr_b16 {vfr[f % 8].sub(2*rd, 2)}, {reg} offset:{off}"))
    KLA = 3; VLA = 6
    def qk_mfmas(c):
        out = []
        b = c & 1
        for f in range(16):
            kt, s_ = divmod(f, 4)
            ms = range(4) if f % 2 == 0 else range(3, -1, -1)
            for j, m in enumerate(ms):
                cin = negm[m] if s_ == 0 else S[b][kt][m]
                out.append((f"v_mfma_f32_16x16x32_bf16 {S[b][kt][m]}, {kfr[f % 4]}, {Q[m][s_]}, {cin}", ("k", c, f) if j == 0 else None))
        return out
    def pv_mfmas(c):
        out = []
        b = c & 1
        for ks in range(2):
            for dt in range(8):
                f = ks * 8 + dt
                ms = range(4) if f % 2 == 0 else range(3, -1, -1)
                for j, m in enumerate(ms):
                    out.append((f"v_mfma_f32_16x16x32_bf16 {O[dt][m]}, {vfr[f % 8]}, {Pb[b][ks][m]}, {O[dt][m]}", ("v", c, f) if j == 0 else None))
            for m in range(4):
                out.append((f"v_mfma_f32_16x16x32_bf16 {lac[m]}, {ones}, {Pb[b][ks][m]}, {lac[m]}", None))
        return out
    def softmax_ops(c):
        b = c & 1; ops = []; t = 0
        first = True
        for ks in range(2):
            for m in range(4):
                for hf in range(2):
                    Sx = S[b][2 * ks + hf][m]; Px = Pb[b][ks][m]
                    e = [et[(t + j) % 8] for j in range(4)]; t += 4
                    ops += [f"v_exp_f32 {e[0]}, {Sx[0]}", f"v_exp_f32 {e[1]}, {Sx[1]}", f"v_exp_f32 {e[2]}, {Sx[2]}",
                            f"v_cvt_pk_bf16_f32 {Px[2*hf]}, {e[0]}, {e[1]}", f"v_exp_f32 {e[3]}, {Sx[3]}"]
                    ops.append(("late", f"v_cvt_pk_bf16_f32 {Px[2*hf+1]}, {e[2]}, {e[3]}"))
                    if hf == 1:
                        if first: ops.append(("late", f"v_or_b32 {vor}, {Px[0]}, {Px[1]}")); first = False
                        else: ops.append(("late", f"v_or3_b32 {vor}, {vor}, {Px[0]}, {Px[1]}"))
                        ops.append(("late", f"v_or3_b32 {vor}, {vor}, {Px[2]}, {Px[3]}"))
        out = []; pend = []
        for o in ops:
            if isinstance(o, tuple): pend.append(o[1])
            else:
                out.append(o)
                if pend: out += pend; pend = []
        out += pend
        return out
    def iteration(i, do_qk, do_pv, do_sm, kd=None, vd=(), bar=True, tail=False):
        mf = []
        if do_qk: mf += qk_mfmas(i + 1)
        if do_pv: mf += pv_mfmas(i - 1)
        nm = len(mf)
        gaps = [[] for _ in range(nm)]; pre = [[] for _ in range(nm)]
        nqk = 64 if do_qk else 0
        for idx, (txt, tag) in enumerate(mf):
            if tag is None: continue
            kind, c, f = tag
            if kind == "k":
                pre[idx].append(lambda c=c, f=f: P.wait(lg=kf_tok[(c, f)]))
                fn = f + KLA
                if fn < 16:
                    gaps[idx].append(lambda c=c, fn=fn: kread(c, fn, 0)); gaps[idx + 1].append(lambda c=c, fn=fn: kread(c, fn, 1))
                if do_pv and f >= 16 - 3:
                    for u in range(2):
                        vf = (f - 13) * 2 + u
                        gaps[idx + 2 + u].append(lambda vf=vf: (vread(i - 1, vf, 0), vread(i - 1, vf, 1)))
            else:
                if f % 2 == 0: pre[idx].append(lambda c=c, f=f: P.wait(lg=vf_tok[(c, min(f + 1, 15))]))
                fn = f + VLA
                if fn < 16:
                    gaps[idx].append(lambda c=c, fn=fn: vread(c, fn, 0)); gaps[idx + 1].append(lambda c=c, fn=fn: vread(c, fn, 1))
        if do_pv and not do_qk:
            pass
        nxt_qk = not tail
        if bar:
            bpos = nm - 10
            def dobar():
                tk = []
                if nxt_qk: tk += ktok[i + 2]
                if i in vtok: tk += vtok[i]
                P.wait(vm=tk); P.e("s_barrier")
            pre[bpos].append(dobar)
            if nxt_qk:
                for f in range(KLA):
                    gaps[bpos + 3 * f].append(lambda f=f: kread(i + 2, f, 0)); gaps[bpos + 3 * f + 1].append(lambda f=f: kread(i + 2, f, 1))
            else:
                for f in range(VLA):
                    gaps[bpos + f].append(lambda f=f: (vread(i, f, 0), vread(i, f, 1)))
        if do_sm:
            ops = softmax_ops(i)
            n = len(ops)
            lastpos = nm - 2
            for k_, o in enumerate(ops): gaps[(k_ * lastpos) // n].append(o)
        dl = []
        if kd is not None:
            for u in range(4): dl.append((lambda u=u: kdma_pre(kd, u), lambda u=u: kdma(kd, u)))
        for c in vd:
            for u in range(4): dl.append((lambda u=u, c=c: vdma_pre(c, u), lambda u=u, c=c: vdma(c, u)))
        for k_, (a_, b_) in enumerate(dl):
            pos = 6 + (k_ * (nm - 30)) // max(1, len(dl))
            gaps[pos].append(a_); gaps[pos + 1].append(b_)
        do = lambda x: x() if callable(x) else P.e(x)
        for idx, (txt, tag) in enumerate(mf):
            for x in pre[idx]: do(x)
            P.e(txt)
            for x in gaps[idx]: do(x)
    def v_lookahead(c):
        for f in range(VLA): vread(c, f, 0); vread(c, f, 1)
    def check(b, tag):
        P.e(f"v_and_b32 {vx[0]}, 0x40004000, {vor}\nv_cmp_ne_u32 vcc, 0, {vx[0]}")
        P.e(f"s_cbranch_vccz L_back{tag}_{name}\ns_call_b64 {sret}, L_rare{b}_{name}\nL_back{tag}_{name}:")

    def allmax4(reg, t):
        P.e(f"v_mov_b32 {t}, {reg}\ns_nop 1\nv_permlane32_swap_b32 {reg}, {t}\ns_nop 1\nv_max_f32 {reg}, {reg}, {t}")
        P.e(f"v_mov_b32 {t}, {reg}\ns_nop 1\nv_permlane16_swap_b32 {reg}, {t}\ns_nop 1\nv_max_f32 {reg}, {reg}, {t}")
    def rescale(b, first):
        P.e("s_nop 15")
        for m in range(4):
            d = vx[0]; t = vx[1]; sc = vx[2]
            vals = [S[b][kt][m][r] for kt in range(4) for r in range(4)]
            P.e(f"v_max3_f32 {d}, {vals[0]}, {vals[1]}, {vals[2]}")
            for j in range(3, 15, 2): P.e(f"v_max3_f32 {d}, {d}, {vals[j]}, {vals[j+1]}")
            P.e(f"v_max_f32 {d}, {d}, {vals[15]}")
            allmax4(d, t)
            P.e(f"v_add_f32 {d}, {f2u(QBIAS):#x}, {d}")
            if not first: P.e(f"v_max_f32 {d}, 0, {d}")
            for kt in range(4):
                for r in range(4):
                    P.e(f"v_sub_f32 {S[b][kt][m][r]}, {S[b][kt][m][r]}, {d}")
                    if not first: P.e(f"v_sub_f32 {S[1-b][kt][m][r]}, {S[1-b][kt][m][r]}, {d}")
            for r in range(4): P.e(f"v_sub_f32 {negm[m][r]}, {negm[m][r]}, {d}")
            if not first:
                P.e(f"v_sub_f32 {sc}, 0, {d}\nv_exp_f32 {sc}, {sc}\ns_nop 0")
                for A in [O[dt][m] for dt in range(8)] + [lac[m]]:
                    for r in range(4):
                        P.e(f"v_accvgpr_read_b32 {t}, {A[r]}\ns_nop 0\nv_mul_f32 {t}, {t}, {sc}\nv_accvgpr_write_b32 {A[r]}, {t}")
        if not first:
            for o in softmax_ops(b): P.e(o)
            P.e("s_nop 1")

    for f in range(KLA): kread(0, f, 0); kread(0, f, 1)
    mf0 = qk_mfmas(0)
    vq = [(c, u) for c in range(0, 2) for u in range(4)]
    for idx, (txt, tag) in enumerate(mf0):
        if tag:
            _, c, f = tag
            P.wait(lg=kf_tok[(c, f)])
        P.e(txt)
        if tag and tag[2] + KLA < 16: kread(0, tag[2] + KLA, 0); kread(0, tag[2] + KLA, 1)
        if idx % 8 == 5 and vq:
            c, u = vq.pop(0); vdma_pre(c, u); P.e("s_nop 0"); vdma(c, u)
    for f in range(KLA): kread(1, f, 0); kread(1, f, 1)
    rescale(0, True)
    P.e("s_barrier")
    T_.stamp()
    iteration(0, True, False, True, kd=4, vd=(2,)); check(0, "p")
    def body(it):
        i = 1 + 2 * it
        iteration(i, True, True, True, kd=i + 4, vd=(i + 2,)); check(1, "a")
        iteration(i + 1, True, True, True, kd=i + 5, vd=(i + 3,)); check(0, "b")
        P.e(f"v_swap_b32 {vkr[0]}, {vkr[1]}\nv_swap_b32 {vvr[0]}, {vvr[1]}")
        pair["k"] ^= 1; pair["v"] ^= 1
    P.loop(f"L_loop_{name}", 3, body, scnt)
    T_.stamp()
    v_lookahead(6)
    iteration(7, False, True, True, tail=True); check(1, "c")
    iteration(8, False, True, False, bar=False)
    T_.stamp()
    P.e(f"s_lshl_b32 {st0}, {shead}, 19")
    P.e("s_nop 7")
    for m in range(4):
        rl = vx[0]
        P.e(f"v_accvgpr_read_b32 {rl}, {lac[m][0]}\ns_nop 0\nv_rcp_f32 {rl}, {rl}")
        for kb in range(4):
            tt = [R_("v", 64 + ((m * 4 + kb) % 8) * 8 + j) for j in range(8)]
            for hf in range(2):
                for r in range(4): P.e(f"v_accvgpr_read_b32 {tt[4*hf+r]}, {O[2*kb+hf][m][r]}")
            for j in range(8): P.e(f"v_mul_f32 {tt[j]}, {tt[j]}, {rl}")
            for j in range(4): P.e(f"v_cvt_pk_bf16_f32 {tt[j]}, {tt[2*j]}, {tt[2*j+1]}")
            P.e(f"s_add_u32 {st1}, {st0}, {(kb >> 1)*262144}")
            P.e(f"buffer_store_dwordx4 {R_('v', tt[0].base, 4)}, {vact[m >> 1]}, {srdO}, {st1} offen offset:{(m & 1)*2048 + (kb & 1)*1024}")
    T_.stamp()
    if ts: P.e("s_waitcnt vmcnt(0)")
    T_.stamp(); T_.stamp(real=True)
    T_.flush(vtmp, pws, "s2", "v0")
    P.e(f"s_endpgm")
    for b in range(2):
        P.e(f"L_rare{b}_{name}:")
        rescale(b, False)
        P.e(f"s_setpc_b64 {sret}")
    P.e(f"L_end_{name}:\ns_endpgm")
    lines, nfix = fix_hazards(P.lines()); check_m0(lines)
    return name, lines, 256, 256, 102, LDS_BYTES
```

```python
from gemm_core import *
from k_rows import WS_PO, WS_PD

def gen_proj4(kind, ts=False, name=None, NS=4, R=4, RF=8, U=4, ramp_cap=10, kidx=3):
    name = name or ("oproj_kernel" if kind == "o" else "down_kernel")
    P = Prog()
    MT = 4; NT = 8
    K = 4096 if kind == "o" else 3584
    KL = K // 4; NST = KL // 64
    STG = 16 * 1056
    LDS_BYTES = NS * STG
    WROW = 2048
    va = Alloc("v", 1, 256); aa = Alloc("a", 0, 256); sa = Alloc("s", 4, 96)
    vlane = va.get(); vtmp = va.get(4, 2); vdW = va.get(); vtr = va.get(); vact = va.get(2); et = va.get(4, 4)
    acc = [[va.get(4, 4) for T in range(NT)] for m in range(MT)]
    ring = [[aa.get(4, 4) for m in range(MT)] for _ in range(R)]
    wf = [aa.get(4, 4) for _ in range(RF)]
    pw = sa.get(2, 2); pws = sa.get(2, 2)
    srdW = sa.get(4, 4); srdA = sa.get(4, 4); srdO = sa.get(4, 4)
    swave = sa.get(); srbk = sa.get(); scb = sa.get(); sks = sa.get(); sWoff = sa.get(); sAoff = sa.get(); sLds = sa.get(); scnt = sa.get(); st0 = sa.get(); st1 = sa.get()
    T_ = TS(P, sa, kidx, ts)
    P.e(f"s_cmp_ge_u32 s2, 256\ns_cbranch_scc1 L_end_{name}")
    T_.stamp(real=True); T_.stamp()
    load_ptr(P, pw, "wo" if kind == "o" else "wd"); load_ptr(P, pws, "ws")
    P.e(f"v_lshrrev_b32 {vtmp[0]}, 6, v0\nv_and_b32 {vlane}, 63, v0\ns_nop 0\nv_readfirstlane_b32 {swave}, {vtmp[0]}")
    P.e(f"s_lshr_b32 {st0}, s2, 3\ns_and_b32 {srbk}, {st0}, 7\ns_lshr_b32 {st0}, {st0}, 3\ns_and_b32 {st1}, s2, 7\ns_lshr_b32 {sks}, {st1}, 1\ns_and_b32 {st1}, {st1}, 1\ns_lshl_b32 {scb}, {st1}, 2\ns_add_u32 {scb}, {scb}, {st0}")
    P.e(f"v_lshrrev_b32 {vtmp[0]}, 4, {vlane}\nv_mul_u32_u24 {vtmp[1]}, {16*WROW}, {vtmp[0]}\nv_and_b32 {vtmp[2]}, 15, {vlane}\nv_lshlrev_b32 {vtmp[2]}, 4, {vtmp[2]}")
    P.e(f"s_lshl_b32 {st0}, {scb}, 8\nv_add3_u32 {vdW}, {vtmp[1]}, {vtmp[2]}, {st0}")
    P.e(f"s_mul_i32 {sWoff}, {sks}, {KL*WROW}\ns_mul_i32 {st0}, {swave}, {4*WROW}\ns_add_u32 {sWoff}, {sWoff}, {st0}\ns_mul_i32 {sLds}, {swave}, {4*1056}")
    P.e(f"v_lshrrev_b32 {vtmp[0]}, 2, {vlane}\nv_mul_u32_u24 {vtr}, 1056, {vtmp[0]}\nv_and_b32 {vtmp[0]}, 3, {vlane}\nv_lshlrev_b32 {vtmp[0]}, 3, {vtmp[0]}\nv_add_u32 {vtr}, {vtr}, {vtmp[0]}")
    P.e(f"s_lshl_b32 {st0}, {srbk}, 4\ns_lshl_b32 {st1}, {swave}, 2\ns_add_u32 {st0}, {st0}, {st1}\ns_lshl_b32 {st0}, {st0}, 11")
    P.e(f"v_lshlrev_b32 {vact[0]}, 4, {vlane}\nv_add_u32 {vact[0]}, {st0}, {vact[0]}\nv_add_u32 {vact[1]}, 4096, {vact[0]}")
    P.e(f"s_mul_i32 {sAoff}, {sks}, {NST*262144}")
    P.e("s_waitcnt lgkmcnt(0)")
    T_.stamp()
    make_srd(P, srdW, pw, K * WROW)
    make_srd(P, srdA, pws, 2048 * K * 2, WS_O if kind == "o" else WS_ACT)
    make_srd(P, srdO, pws, 16 * MB, WS_PO if kind == "o" else WS_PD)
    def dma_pre(stage, i):
        if stage > 0 or i > 0: P.e(f"s_add_u32 {sWoff}, {sWoff}, {WROW if i > 0 else (64 - 4 + 1)*WROW}")
        P.e(f"s_add_u32 m0, {sLds}, {(stage % NS)*STG + i*1056}")
    def dma_fn(stage, i): return P.e(f"buffer_load_dwordx4 {vdW}, {srdW}, {sWoff} offen lds")
    act_needs_pre = lambda g, m: m == 0 and g > 0 and (g & 1) == 0
    def act_pre(g, m): P.e(f"s_add_u32 {sAoff}, {sAoff}, 262144")
    def act_fn(g, m):
        return P.e(f"buffer_load_dwordx4 {ring[g % R][m]}, {vact[m >> 1]}, {srdA}, {sAoff} offen offset:{(m & 1)*2048 + (g & 1)*1024}")
    def tr_fn(G, T, rd, dst):
        stage, q = divmod(G, 2); slot = stage % NS
        return P.e(f"ds_read_b64_tr_b16 {dst}, {vtr} offset:{slot * STG + (2 * q + rd) * 256 + 32 * T}")
    C = GemmCore(P, name, MT, NT, NST, NS, R, acc, ring, wf, 4, dma_fn, act_fn, tr_fn, scnt, U=U, ramp_cap=ramp_cap,
                 dma_pre=dma_pre, act_pre=act_pre, act_needs_pre=act_needs_pre)
    C.prologue_loads(n_act_steps=1, n_dma_stages=1)
    T_.stamp()
    for m in range(MT):
        for T in range(NT):
            for r in range(4): P.e(f"v_mov_b32 {acc[m][T][r]}, 0")
    C.start()
    T_.stamp()
    C.after_peel = T_.stamp
    C.run(P1=2)
    T_.stamp()
    P.e(f"s_lshl_b32 {st0}, {sks}, 22\ns_lshl_b32 {st1}, {scb}, 19\ns_add_u32 {st0}, {st0}, {st1}")
    for m in range(MT):
        for kb in range(4):
            A0, A1 = acc[m][2 * kb], acc[m][2 * kb + 1]
            P.e(f"v_cvt_pk_bf16_f32 {A0[0]}, {A0[0]}, {A0[1]}\nv_cvt_pk_bf16_f32 {A0[1]}, {A0[2]}, {A0[3]}\nv_cvt_pk_bf16_f32 {A0[2]}, {A1[0]}, {A1[1]}\nv_cvt_pk_bf16_f32 {A0[3]}, {A1[2]}, {A1[3]}")
            P.e(f"s_add_u32 {st1}, {st0}, {(kb >> 1)*262144}")
            P.e(f"buffer_store_dwordx4 {A0}, {vact[m >> 1]}, {srdO}, {st1} offen offset:{(m & 1)*2048 + (kb & 1)*1024}")
    T_.stamp()
    if ts: P.e("s_waitcnt vmcnt(0)")
    T_.stamp(); T_.stamp(real=True)
    T_.flush(vtmp, pws, "s2", "v0")
    P.e(f"L_end_{name}:\ns_endpgm")
    lines, nfix = fix_hazards(P.lines()); check_m0(lines)
    return name, lines, va.hi, aa.hi, 102, LDS_BYTES
```

```python
from kcommon import *
CS = 128 ** -0.5 * LOG2E
WS_PO = WS_X2
WS_PD = 84 * MB
WS_X2I = 40 * MB

def unpack(P, dst_lo, dst_hi, src):
    P.e(f"v_lshlrev_b32 {dst_lo}, 16, {src}\nv_and_b32 {dst_hi}, 0xffff0000, {src}")

def xlane_sum(P, x, t):
    P.e(f"v_add_f32_dpp {x}, {x}, {x} row_ror:8 row_mask:0xf bank_mask:0xf")
    P.e(f"v_mov_b32 {t}, {x}\ns_nop 1\nv_permlane16_swap_b32 {x}, {t}\ns_nop 1\nv_add_f32 {x}, {x}, {t}")
    P.e(f"v_mov_b32 {t}, {x}\ns_nop 1\nv_permlane32_swap_b32 {x}, {t}\ns_nop 1\nv_add_f32 {x}, {x}, {t}")

def gen_rows(kind, ts=False, NP=4):
    name = {"ln1": "ln1_kernel", "ln2": "ln2_kernel", "fin": "fin_kernel"}[kind]
    P = Prog()
    va = Alloc("v", 1, 256); sa = Alloc("s", 4, 96)
    vt = va.get(8, 4); vfa = va.get(); vxa = va.get(); vma = va.get(); vld = va.get()
    X = [va.get(8, 4) for i in range(4)]
    raw = [va.get(4, 4) for i in range(4)]
    par = [[va.get(4, 4) for p in range(NP)] for i in range(4)] if kind != "ln1" else None
    m1 = [va.get(8, 4) for i in range(4)]; m2 = [va.get(8, 4) for i in range(4)]; m3 = [va.get(8, 4) for i in range(4)] if kind == "ln2" else None
    x2r = [va.get(8, 4) for i in range(4)] if kind == "fin" else None
    px = sa.get(2, 2); pws = sa.get(2, 2); pout = sa.get(2, 2)
    srdX = sa.get(4, 4); srdM = sa.get(4, 4); srdP = sa.get(4, 4); srdF = sa.get(4, 4); srdI = sa.get(4, 4)
    st0 = sa.get(); st1 = sa.get(); so = [sa.get() for _ in range(4)]
    P.e(f"s_cmp_ge_u32 s2, 256\ns_cbranch_scc1 L_end_{name}")
    load_ptr(P, px, "x" if kind != "fin" else "out"); load_ptr(P, pws, "ws")
    P.e(f"v_lshrrev_b32 {vt[0]}, 6, v0\nv_lshlrev_b32 {vt[0]}, 18, {vt[0]}")
    P.e(f"v_bfe_u32 {vt[1]}, v0, 5, 1\nv_lshlrev_b32 {vt[1]}, 10, {vt[1]}")
    P.e(f"v_bfe_u32 {vt[2]}, v0, 3, 2\nv_lshlrev_b32 {vt[2]}, 8, {vt[2]}")
    P.e(f"v_and_b32 {vt[3]}, 7, v0\nv_lshlrev_b32 {vt[4]}, 4, {vt[3]}")
    P.e(f"v_add3_u32 {vfa}, {vt[0]}, {vt[1]}, {vt[2]}\nv_add_u32 {vfa}, {vfa}, {vt[4]}")
    P.e(f"s_lshr_b32 {st0}, s2, 1\ns_lshl_b32 {st0}, {st0}, 11\ns_and_b32 {st1}, s2, 1\ns_lshl_b32 {st1}, {st1}, 7\ns_add_u32 {st0}, {st0}, {st1}\nv_add_u32 {vfa}, {st0}, {vfa}")
    P.e(f"v_lshrrev_b32 {vt[0]}, 5, v0\nv_lshlrev_b32 {vt[0]}, 5, {vt[0]}\nv_lshrrev_b32 {vt[2]}, 6, {vt[2]}\nv_add_u32 {vt[0]}, {vt[0]}, {vt[2]}")
    P.e(f"v_lshlrev_b32 {vma}, 2, {vt[0]}")
    P.e(f"s_lshl_b32 {st0}, s2, 14\nv_lshlrev_b32 {vt[3]}, 11, {vt[3]}\nv_lshlrev_b32 {vt[0]}, 1, {vt[0]}\nv_add3_u32 {vxa}, {vt[3]}, {vt[0]}, {st0}")
    P.e("s_waitcnt lgkmcnt(0)")
    make_srd(P, srdX, px, 2048 * 1024 * 2)
    make_srd(P, srdM, pws, 6144 * 4, WS_MODF)
    if kind != "ln1": make_srd(P, srdP, pws, NP * 4 * MB, WS_PO if kind == "ln2" else WS_PD)
    if kind != "fin": make_srd(P, srdF, pws, 4 * MB, WS_H if kind == "ln1" else WS_H2)
    if kind != "ln1": make_srd(P, srdI, pws, 8 * MB, WS_X2I)
    for i in range(4): P.e(f"s_mov_b32 {so[i]}, {i * 4 * 262144}")
    tk = []
    if kind != "fin":
        for i in range(4):
            tk.append(P.e(f"buffer_load_dwordx2 {raw[i].sub(0,2)}, {vxa}, {srdX}, 0 offen offset:{i*512}"))
            tk.append(P.e(f"buffer_load_dwordx2 {raw[i].sub(2,2)}, {vxa}, {srdX}, 0 offen offset:{i*512 + 32}"))
    if kind != "ln1":
        for i in range(4):
            for p in range(NP):
                if i == 0 and p == 0: P.e(f"s_mov_b32 {st0}, {so[0]}")
                P.e(f"s_add_u32 {st0}, {so[i]}, {p*4*MB}")
                tk.append(P.e(f"buffer_load_dwordx4 {par[i][p]}, {vfa}, {srdP}, {st0} offen"))
    if kind == "fin":
        P.e(f"v_lshlrev_b32 {vld}, 1, {vfa}")
        for i in range(4):
            P.e(f"s_lshl_b32 {st0}, {so[i]}, 1")
            tk.append(P.e(f"buffer_load_dwordx4 {x2r[i].sub(0,4)}, {vld}, {srdI}, {st0} offen"))
            tk.append(P.e(f"buffer_load_dwordx4 {x2r[i].sub(4,4)}, {vld}, {srdI}, {st0} offen offset:16"))
    mods = {"ln1": [(m1, 1), (m2, 0)], "ln2": [(m1, 4), (m2, 3), (m3, 2)], "fin": [(m1, 5)]}[kind]
    tm = []
    for regs, mi in mods:
        P.e(f"s_mov_b32 {st1}, {mi*4096}")
        for i in range(4):
            tm.append(P.e(f"buffer_load_dwordx4 {regs[i].sub(0,4)}, {vma}, {srdM}, {st1} offen offset:{i*1024}"))
            tm.append(P.e(f"buffer_load_dwordx4 {regs[i].sub(4,4)}, {vma}, {srdM}, {st1} offen offset:{i*1024 + 64}"))
    P.wait(vm=tk)
    if kind != "fin":
        for i in range(4):
            for j in range(4): unpack(P, X[i][2*j], X[i][2*j+1], raw[i][j])
    if kind != "ln1":
        P.wait(vm=tm)
        gate = m3 if kind == "ln2" else m1
        for i in range(4):
            for j in range(4):
                a0, a1 = vt[0], vt[1]; b0, b1 = vt[2], vt[3]
                unpack(P, a0, a1, par[i][0][j])
                for p in range(1, NP):
                    unpack(P, b0, b1, par[i][p][j])
                    P.e(f"v_add_f32 {a0}, {a0}, {b0}\nv_add_f32 {a1}, {a1}, {b1}")
                base = X[i] if kind == "ln2" else x2r[i]
                P.e(f"v_fma_f32 {X[i][2*j]}, {a0}, {gate[i][2*j]}, {base[2*j]}\nv_fma_f32 {X[i][2*j+1]}, {a1}, {gate[i][2*j+1]}, {base[2*j+1]}")
    if kind == "fin":
        for i in range(4):
            for j in range(4): P.e(f"v_cvt_pk_bf16_f32 {raw[i][j]}, {X[i][2*j]}, {X[i][2*j+1]}")
            P.e(f"buffer_store_dwordx2 {raw[i].sub(0,2)}, {vxa}, {srdX}, 0 offen offset:{i*512}")
            P.e(f"buffer_store_dwordx2 {raw[i].sub(2,2)}, {vxa}, {srdX}, 0 offen offset:{i*512 + 32}")
        P.e(f"L_end_{name}:\ns_endpgm")
        lines, _ = fix_hazards(P.lines())
        return name, lines, va.hi, 0, 102, 0
    if kind == "ln2":
        P.e(f"v_lshlrev_b32 {vld}, 1, {vfa}")
        for i in range(4):
            P.e(f"s_lshl_b32 {st0}, {so[i]}, 1")
            P.e(f"buffer_store_dwordx4 {X[i].sub(0,4)}, {vld}, {srdI}, {st0} offen")
            P.e(f"buffer_store_dwordx4 {X[i].sub(4,4)}, {vld}, {srdI}, {st0} offen offset:16")
    vs = vt[4]; vtm = vt[5]; vl = vt[6]; vrd = vt[7]
    P.e(f"v_lshrrev_b32 {vl}, 6, v0\nv_lshlrev_b32 {vl}, 5, {vl}\nv_and_b32 {vrd}, 7, v0\nv_lshlrev_b32 {vrd}, 2, {vrd}\nv_add_u32 {vl}, {vl}, {vrd}")
    def block_sum(off):
        xlane_sum(P, vs, vtm)
        P.e(f"ds_write_b32 {vl}, {vs} offset:{off}\ns_waitcnt lgkmcnt(0)\ns_barrier")
        P.e(f"ds_read_b32 {vt[0]}, {vrd} offset:{off}\nds_read_b32 {vt[1]}, {vrd} offset:{off+32}\nds_read_b32 {vt[2]}, {vrd} offset:{off+64}\nds_read_b32 {vt[3]}, {vrd} offset:{off+96}\ns_waitcnt lgkmcnt(0)")
        P.e(f"v_add_f32 {vt[0]}, {vt[0]}, {vt[1]}\nv_add_f32 {vt[2]}, {vt[2]}, {vt[3]}\nv_add_f32 {vs}, {vt[0]}, {vt[2]}")
    P.e(f"v_add_f32 {vs}, {X[0][0]}, {X[0][1]}")
    for i in range(4):
        for j in range(8):
            if i == 0 and j < 2: continue
            P.e(f"v_add_f32 {vs}, {vs}, {X[i][j]}")
    block_sum(0)
    P.e(f"v_mul_f32 {vs}, {f2u(1.0/1024):#x}, {vs}")
    for i in range(4):
        for j in range(8): P.e(f"v_sub_f32 {X[i][j]}, {X[i][j]}, {vs}")
    P.e(f"v_mul_f32 {vs}, {X[0][0]}, {X[0][0]}")
    for i in range(4):
        for j in range(8):
            if i == 0 and j == 0: continue
            P.e(f"v_fmac_f32 {vs}, {X[i][j]}, {X[i][j]}")
    block_sum(128)
    P.e(f"v_mov_b32 {vtm}, {f2u(1e-5):#x}\nv_fmac_f32 {vtm}, {f2u(1.0/1024):#x}, {vs}\nv_rsq_f32 {vs}, {vtm}")
    if kind == "ln1":
        P.wait(vm=tm)
        P.e(f"s_nop 0\nv_mul_f32 {vs}, {f2u(CS):#x}, {vs}")
    for i in range(4):
        for j in range(8):
            P.e(f"v_mul_f32 {X[i][j]}, {X[i][j]}, {vs}")
            P.e(f"v_fma_f32 {X[i][j]}, {X[i][j]}, {m1[i][j]}, {X[i][j]}")
            if kind == "ln1": P.e(f"v_fmac_f32 {X[i][j]}, {f2u(CS):#x}, {m2[i][j]}")
            else: P.e(f"v_add_f32 {X[i][j]}, {X[i][j]}, {m2[i][j]}")
        for j in range(4): P.e(f"v_cvt_pk_bf16_f32 {raw[i][j]}, {X[i][2*j]}, {X[i][2*j+1]}")
        P.e(f"buffer_store_dwordx4 {raw[i]}, {vfa}, {srdF}, {so[i]} offen")
    P.e(f"L_end_{name}:\ns_endpgm")
    lines, _ = fix_hazards(P.lines())
    return name, lines, va.hi, 0, 102, 512

def gen_mod(ts=False):
    name = "mod_kernel"
    P = Prog()
    va = Alloc("v", 1, 256); sa = Alloc("s", 4, 96)
    vt = va.get(8, 4); vw = va.get(); vl = va.get()
    W = [va.get(4, 4) for _ in range(16)]; sv = va.get(16, 4); acc = va.get(8, 4); cr = va.get(4, 4)
    pc = sa.get(2, 2); pw = sa.get(2, 2); pws = sa.get(2, 2); srdC = sa.get(4, 4); srdW = sa.get(4, 4); srdO = sa.get(4, 4); st0 = sa.get(); st1 = sa.get(); sslab = sa.get()
    P.e(f"s_cmp_ge_u32 s2, 192\ns_cbranch_scc1 L_end_{name}")
    load_ptr(P, pc, "c"); load_ptr(P, pw, "wmod"); load_ptr(P, pws, "ws")
    P.e(f"s_and_b32 {st0}, s2, 7\ns_mul_i32 {st0}, {st0}, 24\ns_lshr_b32 {st1}, s2, 3\ns_add_u32 {sslab}, {st0}, {st1}")
    P.e(f"v_lshrrev_b32 {vt[0]}, 2, v0\nv_mul_u32_u24 {vw}, 12288, {vt[0]}\nv_and_b32 {vt[1]}, 3, v0\nv_lshlrev_b32 {vt[1]}, 4, {vt[1]}\ns_lshl_b32 {st0}, {sslab}, 6\nv_add3_u32 {vw}, {vw}, {vt[1]}, {st0}")
    P.e(f"v_lshlrev_b32 {vt[2]}, 3, v0")
    P.e("s_waitcnt lgkmcnt(0)")
    make_srd(P, srdC, pc, 2048); make_srd(P, srdW, pw, 1024 * 12288); make_srd(P, srdO, pws, 6144 * 4, WS_MODF)
    tc = P.e(f"buffer_load_dwordx2 {cr.sub(0,2)}, {vt[2]}, {srdC}, 0 offen")
    tw = []
    for i in range(16):
        P.e(f"s_mov_b32 {st0}, {i*64*12288}")
        tw.append(P.e(f"buffer_load_dwordx4 {W[i]}, {vw}, {srdW}, {st0} offen"))
    P.wait(vm=tc)
    for j in range(2): unpack(P, vt[4 + 2*j], vt[5 + 2*j], cr[j])
    for j in range(4):
        P.e(f"v_mul_f32 {cr[j]}, {f2u(-LOG2E):#x}, {vt[4+j]}\nv_exp_f32 {cr[j]}, {cr[j]}\ns_nop 0\nv_add_f32 {cr[j]}, 1.0, {cr[j]}\nv_rcp_f32 {cr[j]}, {cr[j]}\ns_nop 0\nv_mul_f32 {cr[j]}, {cr[j]}, {vt[4+j]}")
    P.e(f"v_lshlrev_b32 {vl}, 4, v0\nds_write_b128 {vl}, {cr}\ns_waitcnt lgkmcnt(0)\ns_barrier")
    P.e(f"v_lshrrev_b32 {vt[0]}, 2, v0\nv_lshlrev_b32 {vt[0]}, 2, {vt[0]}")
    for i in range(16): P.e(f"ds_read_b32 {sv[i]}, {vt[0]} offset:{i*256}")
    P.e("s_waitcnt lgkmcnt(0)")
    for j in range(8): P.e(f"v_mov_b32 {acc[j]}, 0")
    for i in range(16):
        P.wait(vm=tw[i])
        for j in range(4):
            unpack(P, vt[4], vt[5], W[i][j])
            P.e(f"v_fmac_f32 {acc[2*j]}, {vt[4]}, {sv[i]}\nv_fmac_f32 {acc[2*j+1]}, {vt[5]}, {sv[i]}")
    P.e(f"v_lshrrev_b32 {vt[0]}, 2, v0\nv_lshlrev_b32 {vt[0]}, 7, {vt[0]}\nv_and_b32 {vt[1]}, 3, v0\nv_lshlrev_b32 {vt[1]}, 5, {vt[1]}\nv_add_u32 {vl}, {vt[0]}, {vt[1]}")
    P.e(f"ds_write_b128 {vl}, {acc.sub(0,4)} offset:4096\nds_write_b128 {vl}, {acc.sub(4,4)} offset:4112\ns_waitcnt lgkmcnt(0)\ns_barrier")
    P.e(f"v_and_b32 {vt[0]}, 31, v0\nv_lshlrev_b32 {vt[0]}, 2, {vt[0]}\nv_lshrrev_b32 {vt[1]}, 5, v0\nv_lshlrev_b32 {vt[2]}, 10, {vt[1]}\nv_add_u32 {vl}, {vt[0]}, {vt[2]}")
    for j in range(8): P.e(f"ds_read_b32 {sv[j]}, {vl} offset:{4096 + j*128}")
    P.e("s_waitcnt lgkmcnt(0)")
    for j in range(1, 8): P.e(f"v_add_f32 {sv[0]}, {sv[0]}, {sv[j]}")
    P.e(f"v_lshlrev_b32 {vt[2]}, 7, {vt[1]}\nv_add_u32 {vl}, {vt[0]}, {vt[2]}\nds_write_b32 {vl}, {sv[0]} offset:16384\ns_waitcnt lgkmcnt(0)\ns_barrier")
    for j in range(8): P.e(f"ds_read_b32 {sv[j]}, {vt[0]} offset:{16384 + j*128}")
    P.e("s_waitcnt lgkmcnt(0)")
    for j in range(1, 8): P.e(f"v_add_f32 {sv[0]}, {sv[0]}, {sv[j]}")
    P.e(f"s_lshl_b32 {st0}, {sslab}, 7")
    P.e(f"v_cmp_gt_u32 vcc, 32, v0\ns_and_saveexec_b64 s[90:91], vcc\ns_cbranch_execz L_end_{name}")
    P.e(f"buffer_store_dword {sv[0]}, {vt[0]}, {srdO}, {st0} offen")
    P.e(f"L_end_{name}:\ns_endpgm")
    lines, _ = fix_hazards(P.lines())
    return name, lines, va.hi, 0, 102, 16384 + 1024
```

```python
from gemm_core import *

def gen_up(ts=False, R=4, name="up_kernel", ramp_cap=14, MT=4, RF=8, LA=None, wgroup=1, NS=4, SPS=2, U=4, P1=None, ld_span=1.0):
    P = Prog()
    big = MT == 4
    K = 1024; NST = K // (32 * SPS); NT = 14
    va = Alloc("v", 1, 32); aa = Alloc("a", 0, 256); sa = Alloc("s", 4, 96)
    NWG = 256 if big else 512
    ROWS = 32 * SPS
    REG_OFF = ROWS * 224; SLOT = 2 * REG_OFF
    NI = REG_OFF // 1024
    NDW = (NI + 1) // 2
    DUMMY = NS * SLOT
    LDS_BYTES = NS * SLOT + (1024 if NI % 2 else 0)
    WROW = 7168
    vlane = va.get(); vtmp = va.get(4, 2); vdma = va.get(NDW); vtr = va.get(3); vact = va.get(2)
    vt2 = va.get(8, 4)
    acc = [[R_("v", 32 + (m * NT + T) * 4, 4) for T in range(NT)] for m in range(MT)]
    ring = [[aa.get(4, 4) for m in range(MT)] for _ in range(R)]
    wf = [aa.get(4, 4) for _ in range(RF)]
    pw = sa.get(2, 2); pu = sa.get(2, 2); pws = sa.get(2, 2)
    srdW = sa.get(4, 4); srdA = sa.get(4, 4); srdO = sa.get(4, 4)
    swave = sa.get(); srbk = sa.get(); sct = sa.get(); sWoff = sa.get(); sAoff = sa.get(); sLds = sa.get(); sLdsL = sa.get(); scnt = sa.get(); st0 = sa.get(); st1 = sa.get()
    T_ = TS(P, sa, 4, ts)
    P.e(f"s_cmp_ge_u32 s2, {NWG}\ns_cbranch_scc1 L_end_{name}")
    T_.stamp(real=True); T_.stamp()
    load_ptr(P, pw, "wg"); load_ptr(P, pu, "wu"); load_ptr(P, pws, "ws")
    P.e(f"v_lshrrev_b32 {vtmp[0]}, 6, v0\nv_and_b32 {vlane}, 63, v0\ns_nop 0\nv_readfirstlane_b32 {swave}, {vtmp[0]}")
    nb = 3 if big else 4
    P.e(f"s_lshr_b32 {st0}, s2, 3\ns_and_b32 {srbk}, {st0}, {(1 << nb) - 1}\ns_lshr_b32 {st0}, {st0}, {nb}\ns_and_b32 {sct}, s2, 7\ns_lshl_b32 {sct}, {sct}, 2\ns_add_u32 {sct}, {sct}, {st0}")
    P.e(f"s_and_b32 {st0}, {swave}, 1\ns_mul_i32 {st0}, {st0}, {NDW*64}\ns_mul_i32 {st1}, {sct}, 224")
    for t in range(NDW):
        P.e(f"v_add_u32 {vtmp[0]}, {st0}, {vlane}")
        if t: P.e(f"v_add_u32 {vtmp[0]}, {64*t}, {vtmp[0]}")
        P.e(f"v_mul_u32_u24 {vtmp[1]}, 4682, {vtmp[0]}\nv_lshrrev_b32 {vtmp[1]}, 16, {vtmp[1]}")
        P.e(f"v_mul_u32_u24 {vtmp[2]}, 14, {vtmp[1]}\nv_sub_u32 {vtmp[2]}, {vtmp[0]}, {vtmp[2]}")
        P.e(f"v_mul_u32_u24 {vtmp[1]}, {WROW}, {vtmp[1]}\nv_lshlrev_b32 {vtmp[2]}, 4, {vtmp[2]}")
        P.e(f"v_add3_u32 {vdma[t]}, {vtmp[1]}, {vtmp[2]}, {st1}")
    if NI % 2:
        P.e(f"s_and_b32 {st0}, {swave}, 1\ns_lshl_b32 {st0}, {st0}, 30\nv_or_b32 {vdma[NDW-1]}, {st0}, {vdma[NDW-1]}")
    P.e(f"s_lshr_b32 {st0}, {swave}, 1\ns_mul_i32 {st0}, {st0}, {REG_OFF}\ns_and_b32 {st1}, {swave}, 1\ns_mul_i32 {st1}, {st1}, {NDW*1024}\ns_add_u32 {sLds}, {st0}, {st1}")
    P.e(f"v_lshrrev_b32 {vtmp[0]}, 2, {vlane}\nv_mul_u32_u24 {vtr[0]}, 224, {vtmp[0]}\nv_and_b32 {vtmp[0]}, 3, {vlane}\nv_lshlrev_b32 {vtmp[0]}, 3, {vtmp[0]}")
    SPB = 65536 // SLOT
    P.e(f"v_add_u32 {vtr[0]}, {vtr[0]}, {vtmp[0]}\nv_add_u32 {vtr[1]}, {SPB*SLOT}, {vtr[0]}\nv_add_u32 {vtr[2]}, {2*SPB*SLOT}, {vtr[0]}")
    P.e(f"s_lshl_b32 {st0}, {srbk}, {4 if big else 3}\ns_lshl_b32 {st1}, {swave}, {2 if big else 1}\ns_add_u32 {st0}, {st0}, {st1}\ns_lshl_b32 {st0}, {st0}, 11")
    P.e(f"v_lshlrev_b32 {vact[0]}, 4, {vlane}\nv_add_u32 {vact[0]}, {st0}, {vact[0]}\nv_add_u32 {vact[1]}, 4096, {vact[0]}")
    P.e("s_waitcnt lgkmcnt(0)")
    T_.stamp()
    P.e(f"s_cmp_ge_u32 {swave}, 2\ns_cselect_b32 {srdW[0]}, {pu[0]}, {pw[0]}\ns_cselect_b32 {srdW[1]}, {pu[1]}, {pw[1]}")
    P.e(f"s_mov_b32 {srdW[2]}, {K*WROW}\ns_mov_b32 {srdW[3]}, 0x20000")
    make_srd(P, srdA, pws, 2048 * 1024 * 2, WS_H2)
    make_srd(P, srdO, pws, 2048 * 3584 * 2, WS_ACT)
    P.e(f"s_mov_b32 {sWoff}, 0\ns_mov_b32 {sAoff}, 0")
    def dma_pre(stage, t):
        if t == 0 and stage > 0: P.e(f"s_add_u32 {sWoff}, {sWoff}, {ROWS*WROW}")
        if NI % 2 and t == NDW - 1:
            P.e(f"s_add_u32 {st0}, {sLds}, {(stage % NS)*SLOT + t*1024}\ns_bitcmp1_b32 {swave}, 0\ns_cselect_b32 m0, {DUMMY}, {st0}")
        else:
            P.e(f"s_add_u32 m0, {sLds}, {(stage % NS)*SLOT + t*1024}")
    def dma_fn(stage, t):
        return P.e(f"buffer_load_dwordx4 {vdma[t]}, {srdW}, {sWoff} offen lds")
    act_needs_pre = lambda g, m: m == 0 and g > 0 and (g & 1) == 0
    def act_pre(g, m): P.e(f"s_add_u32 {sAoff}, {sAoff}, 262144")
    def act_fn(g, m):
        return P.e(f"buffer_load_dwordx4 {ring[g % R][m]}, {vact[m >> 1]}, {srdA}, {sAoff} offen offset:{(m & 1)*2048 + (g & 1)*1024}")
    def tr_fn(G, T, rd, dst):
        stage, q = divmod(G, SPS); slot = stage % NS
        off = (slot % SPB) * SLOT + (T & 1) * REG_OFF + (32 * q + 16 * rd) * 224 + 32 * (T >> 1)
        assert off < 65536
        return P.e(f"ds_read_b64_tr_b16 {dst}, {vtr[slot // SPB]} offset:{off}")
    C = GemmCore(P, name, MT, NT, NST, NS, R, acc, ring, wf, NDW, dma_fn, act_fn, tr_fn, scnt, U=U, ramp_cap=ramp_cap, LA=LA, wgroup=wgroup, SPS=SPS, ld_span=ld_span,
                 dma_pre=dma_pre, act_pre=act_pre, act_needs_pre=act_needs_pre)
    C.prologue_loads(n_act_steps=1, n_dma_stages=2 if SPS == 2 else 2)
    T_.stamp()
    for m in range(MT):
        for T in range(NT):
            for r in range(4): P.e(f"v_mov_b32 {acc[m][T][r]}, 0")
    C.start()
    T_.stamp()
    C.after_peel = T_.stamp
    C.run(P1)
    T_.stamp()
    P.e(f"s_mul_i32 {st1}, {sct}, 7")
    tmp = vt2
    for t in range(7):
        P.e(f"s_add_u32 {st0}, {st1}, {t}\ns_lshr_b32 {sWoff}, {st0}, 2\ns_lshl_b32 {sWoff}, {sWoff}, 18\ns_bfe_u32 {sAoff}, {st0}, 0x10001\ns_lshl_b32 {sAoff}, {sAoff}, 10\ns_add_u32 {sWoff}, {sWoff}, {sAoff}")
        P.e(f"s_and_b32 {st0}, {st0}, 1\ns_lshl_b32 {st0}, {st0}, 3\ns_add_u32 {sWoff}, {sWoff}, {st0}")
        for m in range(MT):
            Gt, Ut = acc[m][2 * t], acc[m][2 * t + 1]
            for j in range(4): P.e(f"v_mul_f32 {tmp[j]}, {f2u(-LOG2E):#x}, {Gt[j]}")
            for j in range(4): P.e(f"v_exp_f32 {tmp[j]}, {tmp[j]}")
            for j in range(4): P.e(f"v_add_f32 {tmp[j]}, 1.0, {tmp[j]}")
            for j in range(4): P.e(f"v_rcp_f32 {tmp[j]}, {tmp[j]}")
            for j in range(4): P.e(f"v_mul_f32 {Gt[j]}, {Gt[j]}, {Ut[j]}")
            for j in range(4): P.e(f"v_mul_f32 {Gt[j]}, {Gt[j]}, {tmp[j]}")
            for j in range(2): P.e(f"v_cvt_pk_bf16_f32 {Ut[j]}, {Gt[2*j]}, {Gt[2*j+1]}")
            P.e(f"buffer_store_dwordx2 {Ut.sub(0, 2)}, {vact[m >> 1]}, {srdO}, {sWoff} offen offset:{(m & 1)*2048}")
    T_.stamp()
    if ts: P.e("s_waitcnt vmcnt(0)")
    T_.stamp(); T_.stamp(real=True)
    T_.flush(vtmp, pws, "s2", "v0")
    P.e(f"L_end_{name}:\ns_endpgm")
    lines, nfix = fix_hazards(P.lines()); check_m0(lines)
    return name, lines, 32 + MT * NT * 4, aa.hi, 102, LDS_BYTES
```

```python
from asmlib import *

KA = dict(x=0, kc=8, vc=16, wq=24, wo=32, bx=40, wg=48, wu=56, wd=64, c=72, wmod=80, out=88, dbg=96, ws=104)
MB = 1 << 20
WS_H   = 0 * MB
WS_O   = 4 * MB
WS_X2  = 20 * MB
WS_H2  = 52 * MB
WS_ACT = 56 * MB
WS_MOD = 72 * MB
WS_X2F = 40 * MB
WS_MODF = 73 * MB
WS_TS  = 100 * MB
NRB = 64
LOG2E = 1.4426950408889634

def f2u(x):
    import struct
    return struct.unpack("<I", struct.pack("<f", x))[0]

def load_ptr(P, dst, name):
    P.e(f"s_load_dwordx2 {dst}, s[0:1], {KA[name]}")

def make_srd(P, srd, ptr, nbytes, off=0):
    if off:
        P.e(f"s_add_u32 {srd[0]}, {ptr[0]}, {off}")
        P.e(f"s_addc_u32 {srd[1]}, {ptr[1]}, 0")
    else:
        P.e(f"s_mov_b32 {srd[0]}, {ptr[0]}")
        P.e(f"s_mov_b32 {srd[1]}, {ptr[1]}")
    P.e(f"s_mov_b32 {srd[2]}, {nbytes}")
    P.e(f"s_mov_b32 {srd[3]}, 0x20000")

class TS:
    def __init__(self, P, sa, kidx, enable, n=12):
        self.P, self.en, self.kidx = P, enable, kidx
        if enable:
            self.regs = [sa.get(2, 2) for _ in range(n)]
            self.i = 0
    def stamp(self, real=False):
        if not self.en: return
        self.P.e(f"s_mem{'real' if real else ''}time {self.regs[self.i]}")
        if self.i: self.P.e("s_waitcnt lgkmcnt(0)")
        self.i += 1
    def flush(self, va, wsptr, swg, vtid):
        if not self.en: return
        P = self.P
        P.e("s_waitcnt lgkmcnt(0)")
        t0, t1 = va[0], va[1]
        P.e(f"v_cmp_eq_u32 vcc, 0, {vtid}")
        P.e("s_nop 4")
        P.e("s_and_saveexec_b64 s[98:99], vcc")
        P.e(f"s_cbranch_execz L_tsdone{self.kidx}_{id(self)}")
        P.e(f"s_and_b32 s100, {swg}, 1023\ns_lshl_b32 s100, s100, 6")
        P.e(f"s_add_u32 s100, s100, {WS_TS + self.kidx * 65536}")
        P.e(f"s_add_u32 s96, {wsptr[0]}, s100")
        P.e(f"s_addc_u32 s97, {wsptr[1]}, 0")
        P.e(f"v_mov_b32 {t0}, 0")
        for i in range(self.i):
            P.e(f"v_mov_b32 {t1}, {self.regs[i][0]}")
            P.e(f"global_store_dword {t0}, {t1}, s[96:97] offset:{i*4}")
            P.e("s_nop 1")
        P.e(f"L_tsdone{self.kidx}_{id(self)}:")
        P.e("s_mov_b64 exec, s[98:99]")
```

```python
import sys
from build import *
from k_rows import gen_rows, gen_mod
from k_attn import gen_attn
from k_proj4 import gen_proj4
from k_up import gen_up
ts = "ts" in sys.argv
ks = [gen_mod(), gen_rows("ln1"), gen_attn(ts=ts), gen_proj4("o", ts=ts, kidx=3), gen_rows("ln2"), gen_up(ts=ts), gen_proj4("d", ts=ts, kidx=5), gen_rows("fin")]
grids = [("mod_kernel", 192, 256), ("ln1_kernel", 256, 256), ("attn_kernel", 256, 256), ("oproj_kernel", 256, 256), ("ln2_kernel", 256, 256), ("up_kernel", 256, 256), ("down_kernel", 256, 256), ("fin_kernel", 256, 256)]
hdr = open("adaLN_cond__sliding_block_cached__swiglu_ffn__prompt.s.ref").read().split("; Override launch")[0].rstrip()
out = sys.argv[1]
open(out, "w").write(assemble(ks, grids, header=hdr))
for k in ks: print(k[0], len(k[1]), k[2:])
```

```python
from kcommon import *

class GemmCore:
    def __init__(self, P, name, MT, NT, NST, NS, R, acc, ring, wf, ndma, dma_fn, act_fn, tr_fn, scnt, U=4,
                 ramp_cap=None, LA=None, ld_span=1.0, wgroup=1, SPS=2, dma_pre=None, act_pre=None, act_needs_pre=None):
        self.__dict__.update(locals()); del self.self
        self.AH = R - 1
        self.RF = len(wf)
        if LA is None: self.LA = self.RF - 1
        assert self.LA < self.RF and (SPS * NT * U) % self.RF == 0 and (SPS * U) % R == 0 and U % NS == 0, (SPS, NT, U, self.RF, R, NS)
        self.dma_tok = {}; self.act_tok = {}; self.wf_tok = {}
        self.na = 0; self.nd = 0
        self.nG = SPS * NST
        self.bar_done = set()
    def act_changes(self):
        g = self.na // self.MT
        return self.act_needs_pre(g, self.na % self.MT)
    def adv(self, kind):
        if kind == "a": self.na += 1
        else: self.nd += 1
    def rewind(self, loads):
        self.na -= loads.count("a"); self.nd -= loads.count("d")
    def pre_act(self):
        g, m = divmod(self.na, self.MT); self.act_pre(g, m)
    def pre_dma(self):
        s_, i = divmod(self.nd, self.ndma); self.dma_pre(s_, i)
    def issue_act(self):
        g, m = divmod(self.na, self.MT); self.na += 1
        self.act_tok.setdefault(g, []).append(self.act_fn(g, m))
    def issue_dma(self):
        s_, i = divmod(self.nd, self.ndma); self.nd += 1
        self.dma_tok.setdefault(s_, []).append(self.dma_fn(s_, i))
    def trread(self, f, rd):
        G, T = divmod(f, self.NT)
        self.wf_tok.setdefault(f, []).append(self.tr_fn(G, T, rd, self.wf[f % self.RF].sub(2 * rd, 2)))
    def barrier_for(self, stage):
        self.P.wait(vm=self.dma_tok[stage]); self.P.e("s_barrier")
    def plan(self, G, cap):
        SPS = self.SPS
        s_, q = divmod(G, SPS)
        na, nd = self.na, self.nd
        a_lim = (G + self.AH + 1) * self.MT
        d_lim = (s_ + self.NS - 2) * self.ndma + -(-self.ndma * (q + 1) // SPS)
        a_lim = min(a_lim, self.nG * self.MT); d_lim = min(d_lim, self.NST * self.ndma)
        out = []
        while len(out) < cap and (na < a_lim or nd < d_lim):
            da = na // self.MT if na < a_lim else 1 << 30
            dd = SPS * (nd // self.ndma) - 1 if nd < d_lim else 1 << 30
            if dd <= da: out.append("d"); nd += 1
            else: out.append("a"); na += 1
        return out
    def prologue_loads(self, n_act_steps=1, n_dma_stages=1):
        for _ in range(self.ndma * n_dma_stages): self.pre_dma(); self.P.e("s_nop 0"); self.issue_dma()
        for _ in range(self.MT * n_act_steps):
            if self.act_changes(): self.pre_act()
            self.issue_act()
    def pre_w(self, nst):
        for _ in range(self.ndma * nst): self.pre_dma(); self.P.e("s_nop 0"); self.issue_dma()
    def pre_a(self, nsteps):
        for _ in range(self.MT * nsteps):
            if self.act_changes(): self.pre_act()
            self.issue_act()
    def start(self):
        self.barrier_for(0)
        for f in range(self.LA):
            self.trread(f, 0); self.trread(f, 1)
    def step(self, G, cap=None, extra=None, noloads=False):
        P = self.P; SPS = self.SPS
        NT, MT = self.NT, self.MT
        mf = []; mid = {}
        nf_total = self.nG * NT
        rd_st = []
        for T in range(NT):
            f = G * NT + T
            ms = range(MT) if T % 2 == 0 else range(MT - 1, -1, -1)
            base = len(mf)
            pre = []
            if T == 0: pre.append(lambda: P.wait(vm=self.act_tok[G]))
            if T % self.wgroup == 0:
                fl = min(f + self.wgroup - 1, G * NT + NT - 1)
                pre.append(lambda fl=fl: P.wait(lg=self.wf_tok[fl]))
            fn = f + self.LA
            if fn < nf_total:
                if fn % (SPS * NT) == 0:
                    pre.append(lambda st=fn // (SPS * NT): self.barrier_for(st))
                rd_st.append((base, lambda fn=fn: self.trread(fn, 0)))
                rd_st.append((base + MT / 2, lambda fn=fn: self.trread(fn, 1)))
            mid[base] = pre
            for m in ms:
                mf.append(f"v_mfma_f32_16x16x32_bf16 {self.acc[m][T]}, {self.wf[f % self.RF]}, {self.ring[G % self.R][m]}, {self.acc[m][T]}")
        nm = len(mf)
        ld_st = []
        loads = self.plan(G, cap if cap is not None else 1 << 30) if not noloads else []
        n = len(loads)
        for i, kind in enumerate(loads):
            pos = max(0, min(nm - 2, ((2 * i + 1) * nm * self.ld_span) / (2 * n) - 1))
            if kind == "a":
                if self.act_changes(): ld_st.append((pos, self.pre_act))
                ld_st.append((pos, self.issue_act))
            else:
                ld_st.append((pos, self.pre_dma)); ld_st.append((pos + 1, self.issue_dma))
            self.adv(kind)
        self.rewind(loads)
        extra = extra or getattr(self, 'extras', {}).get(G, [])
        self._emit(mf, mid, rd_st, ld_st, extra)
    def _emit(self, mf, mid, rd_st, ld_st, extra):
        P = self.P
        nm = len(mf)
        gaps = [[] for _ in range(nm)]
        for pos, x in rd_st: gaps[min(nm - 1, int(pos))].append(x)
        for st in (ld_st, extra):
            lo = 0
            for pos, x in st:
                g = max(lo, min(nm - 1, int(pos)))
                cand = list(range(g, min(nm, g + 3)))
                h = min(cand, key=lambda t: (len(gaps[t]), t))
                gaps[h].append(x); lo = h
        do = lambda x: x() if callable(x) else P.e(x)
        for i, m in enumerate(mf):
            for x in mid.get(i, []): do(x)
            do(m)
            for x in gaps[i]: do(x)
    def run(self, P1=None):
        P = self.P; U = self.U; SPS = self.SPS
        P1 = U if P1 is None else P1
        for G in range(0, SPS * P1): self.step(G, cap=self.ramp_cap)
        while self.plan(SPS * P1 - 1, 1 << 30):
            for G in range(SPS * P1, SPS * (P1 + 1)): self.step(G, cap=self.ramp_cap)
            P1 += 1
        if getattr(self, "after_peel", None): self.after_peel()
        nloop = (self.NST - P1 - 1) // U
        def body(it):
            for G in range(SPS * (P1 + U * it), SPS * (P1 + U * (it + 1))): self.step(G)
        if nloop > 0:
            P.loop(f"L_loop_{self.name}", nloop, body, self.scnt)
        for G in range(SPS * (P1 + U * nloop), self.nG): self.step(G)
```

```python
from kcommon import *
from mega import WS_SYNC, unpack

def gen_first(code_bytes, ts=False, name="first_kernel", main="main_kernel"):
    P = Prog()
    va = Alloc("v", 1, 256); sa = Alloc("s", 4, 96)
    vt = va.get(8, 4); vw = va.get(); vl = va.get()
    W = [va.get(4, 4) for _ in range(16)]; sv = va.get(16, 4); acc = va.get(8, 4); cr = va.get(4, 4)
    pc = sa.get(2, 2); pw = sa.get(2, 2); pws = sa.get(2, 2); px = sa.get(2, 2); srdC = sa.get(4, 4); srdW = sa.get(4, 4); srdO = sa.get(4, 4); st0 = sa.get(); st1 = sa.get(); sslab = sa.get()
    pcode = sa.get(2, 2)
    P.e(f"s_cmp_ge_u32 s2, 256\ns_cbranch_scc1 L_end_{name}")
    load_ptr(P, pc, "c"); load_ptr(P, pw, "wmod"); load_ptr(P, pws, "ws"); load_ptr(P, px, "x")
    P.e(f"s_cmp_ge_u32 s2, 192\ns_cbranch_scc1 L_aux_{name}")
    P.e(f"s_and_b32 {st0}, s2, 7\ns_mul_i32 {st0}, {st0}, 24\ns_lshr_b32 {st1}, s2, 3\ns_add_u32 {sslab}, {st0}, {st1}")
    P.e(f"v_lshrrev_b32 {vt[0]}, 2, v0\nv_mul_u32_u24 {vw}, 12288, {vt[0]}\nv_and_b32 {vt[1]}, 3, v0\nv_lshlrev_b32 {vt[1]}, 4, {vt[1]}\ns_lshl_b32 {st0}, {sslab}, 6\nv_add3_u32 {vw}, {vw}, {vt[1]}, {st0}")
    P.e(f"v_lshlrev_b32 {vt[2]}, 3, v0")
    P.e("s_waitcnt lgkmcnt(0)")
    make_srd(P, srdC, pc, 2048); make_srd(P, srdW, pw, 1024 * 12288); make_srd(P, srdO, pws, 6144 * 4, WS_MODF)
    tc = P.e(f"buffer_load_dwordx2 {cr.sub(0,2)}, {vt[2]}, {srdC}, 0 offen")
    tw = []
    for i in range(16):
        P.e(f"s_mov_b32 {st0}, {i*64*12288}")
        tw.append(P.e(f"buffer_load_dwordx4 {W[i]}, {vw}, {srdW}, {st0} offen"))
    P.wait(vm=tc)
    for j in range(2): unpack(P, vt[4 + 2*j], vt[5 + 2*j], cr[j])
    for j in range(4):
        P.e(f"v_mul_f32 {cr[j]}, {f2u(-LOG2E):#x}, {vt[4+j]}\nv_exp_f32 {cr[j]}, {cr[j]}\ns_nop 0\nv_add_f32 {cr[j]}, 1.0, {cr[j]}\nv_rcp_f32 {cr[j]}, {cr[j]}\ns_nop 0\nv_mul_f32 {cr[j]}, {cr[j]}, {vt[4+j]}")
    P.e(f"v_lshlrev_b32 {vl}, 4, v0\nds_write_b128 {vl}, {cr}\ns_waitcnt lgkmcnt(0)\ns_barrier")
    P.e(f"v_lshrrev_b32 {vt[0]}, 2, v0\nv_lshlrev_b32 {vt[0]}, 2, {vt[0]}")
    for i in range(16): P.e(f"ds_read_b32 {sv[i]}, {vt[0]} offset:{i*256}")
    P.e("s_waitcnt lgkmcnt(0)")
    for j in range(8): P.e(f"v_mov_b32 {acc[j]}, 0")
    for i in range(16):
        P.wait(vm=tw[i])
        for j in range(4):
            unpack(P, vt[4], vt[5], W[i][j])
            P.e(f"v_fmac_f32 {acc[2*j]}, {vt[4]}, {sv[i]}\nv_fmac_f32 {acc[2*j+1]}, {vt[5]}, {sv[i]}")
    P.e(f"v_lshrrev_b32 {vt[0]}, 2, v0\nv_lshlrev_b32 {vt[0]}, 7, {vt[0]}\nv_and_b32 {vt[1]}, 3, v0\nv_lshlrev_b32 {vt[1]}, 5, {vt[1]}\nv_add_u32 {vl}, {vt[0]}, {vt[1]}")
    P.e(f"ds_write_b128 {vl}, {acc.sub(0,4)} offset:4096\nds_write_b128 {vl}, {acc.sub(4,4)} offset:4112\ns_waitcnt lgkmcnt(0)\ns_barrier")
    P.e(f"v_and_b32 {vt[0]}, 31, v0\nv_lshlrev_b32 {vt[0]}, 2, {vt[0]}\nv_lshrrev_b32 {vt[1]}, 5, v0\nv_lshlrev_b32 {vt[2]}, 10, {vt[1]}\nv_add_u32 {vl}, {vt[0]}, {vt[2]}")
    for j in range(8): P.e(f"ds_read_b32 {sv[j]}, {vl} offset:{4096 + j*128}")
    P.e("s_waitcnt lgkmcnt(0)")
    for j in range(1, 8): P.e(f"v_add_f32 {sv[0]}, {sv[0]}, {sv[j]}")
    P.e(f"v_lshlrev_b32 {vt[2]}, 7, {vt[1]}\nv_add_u32 {vl}, {vt[0]}, {vt[2]}\nds_write_b32 {vl}, {sv[0]} offset:16384\ns_waitcnt lgkmcnt(0)\ns_barrier")
    for j in range(8): P.e(f"ds_read_b32 {sv[j]}, {vt[0]} offset:{16384 + j*128}")
    P.e("s_waitcnt lgkmcnt(0)")
    for j in range(1, 8): P.e(f"v_add_f32 {sv[0]}, {sv[0]}, {sv[j]}")
    P.e(f"s_lshl_b32 {st0}, {sslab}, 7")
    P.e(f"v_cmp_gt_u32 vcc, 32, v0\ns_and_saveexec_b64 s[90:91], vcc\ns_cbranch_execz L_end_{name}")
    P.e(f"buffer_store_dword {sv[0]}, {vt[0]}, {srdO}, {st0} offen")
    P.e(f"s_endpgm")
    P.e(f"L_aux_{name}:\ns_waitcnt lgkmcnt(0)")
    P.e(f"s_cmp_lg_u32 s2, 192\ns_cbranch_scc1 L_aux2_{name}")
    make_srd(P, srdO, pws, 65536, WS_SYNC)
    P.e(f"v_lshlrev_b32 {vw}, 4, v0")
    for j in range(4): P.e(f"v_mov_b32 {acc[j]}, 0")
    for i in range(16):
        P.e(f"s_mov_b32 {st0}, {i*4096}\nbuffer_store_dwordx4 {acc.sub(0,4)}, {vw}, {srdO}, {st0} offen")
    P.e("s_endpgm")
    P.e(f"L_aux2_{name}:\ns_cmp_lt_u32 s2, 200\ns_cbranch_scc1 L_end_{name}\ns_cmp_ge_u32 s2, 208\ns_cbranch_scc1 L_aux3_{name}")
    P.e(f"s_getpc_b64 {pcode}\nL_pc_{name}:\ns_add_u32 {pcode[0]}, {pcode[0]}, {main}-L_pc_{name}\ns_addc_u32 {pcode[1]}, {pcode[1]}, 0")
    P.e(f"v_lshlrev_b32 {vw}, 7, v0")
    for i in range((code_bytes + 32767) // 32768):
        P.e(f"global_load_dword {vt[0]}, {vw}, {pcode}")
        P.e(f"v_add_u32 {vw}, 32768, {vw}")
    P.e("s_waitcnt vmcnt(0)\ns_endpgm")
    P.e(f"L_aux3_{name}:")
    make_srd(P, srdC, px, 4 * MB)
    P.e(f"s_sub_u32 {st0}, s2, 208\ns_mul_i32 {st0}, {st0}, {3*32768}\nv_lshlrev_b32 {vw}, 7, v0")
    for i in range(3):
        P.e(f"buffer_load_dword {vt[0]}, {vw}, {srdC}, {st0} offen\ns_add_u32 {st0}, {st0}, 32768")
    P.e("s_waitcnt vmcnt(0)")
    P.e(f"L_end_{name}:\ns_endpgm")
    lines, _ = fix_hazards(P.lines())
    return name, lines, va.hi, 0, 102, 16384 + 1024
```

```python
from gemm_core import *
CS = 128 ** -0.5 * LOG2E
WS_PO = 20 * MB
WS_PD = 84 * MB
WS_SYNC = 74 * MB
QBIAS = 64.0
LDS_LN = 134144
LDS_TOTAL = 134144 + 1024
SPIN_MAX = 1 << 20
PH_LN1, PH_QA, PH_O, PH_LN2, PH_KU, PH_D = range(6)

def unpack(P, lo, hi, src):
    P.e(f"v_lshlrev_b32 {lo}, 16, {src}\nv_and_b32 {hi}, 0xffff0000, {src}")

def gen_mega(ts=False, name="main_kernel", **opts):
    o = dict(scl=" sc1", scs=" sc1", touch=True)
    o.update(opts)
    SCL = o["scl"]; SCS = o["scs"]
    P = Prog()
    sa = Alloc("s", 4, 94)
    ptr = {}
    for k in ("x", "kc", "vc", "wq", "wo", "wg", "wu", "wd", "out", "ws"): ptr[k] = sa.get(2, 2)
    swave = sa.get(); steam = sa.get(); sx = sa.get(); sjj = sa.get(); smem = sa.get()
    scnt = sa.get(); st0 = sa.get(); st1 = sa.get(); st2 = sa.get(); sidx = sa.get()
    psync = sa.get(2, 2); sret = sa.get(2, 2)
    srdW = sa.get(4, 4); srdA = sa.get(4, 4); srd2 = sa.get(4, 4); srd3 = sa.get(4, 4); srd4 = sa.get(4, 4); srd5 = sa.get(4, 4)
    sWoff = sa.get(); sLds = sa.get(); sAoff = sa.get()
    sp = [sa.get() for _ in range(11)]
    tsp = R_("s", 96, 2); tsq = R_("s", 98, 2); pts = sa.get(2, 2) if ts else None
    nst = [0]; names = []
    def stamp(nm=""):
        if not ts: return
        L = f"L_st{nst[0]}"
        P.e(f"s_cmp_lg_u32 {swave}, 0\ns_cbranch_scc1 {L}")
        P.e(f"s_memrealtime {tsp}\ns_memtime {tsq}\ns_waitcnt lgkmcnt(0)\nv_mov_b32 v2, {tsp[0]}\nv_mov_b32 v3, {tsq[0]}\ns_mov_b64 exec, 1")
        P.e(f"v_mov_b32 v254, 0") if False else None
        P.e(f"global_store_dwordx2 v1, v[2:3], {pts} offset:{nst[0]*8}", nocount=True)
        P.e(f"s_mov_b64 exec, -1\n{L}:"); nst[0] += 1; names.append(nm)
    vlane = R_("v", 1); vsy = R_("v", 2, 2)
    GA = R_("v", 4, 10); vact = R_("v", 14, 2); vtmp = R_("v", 16, 4)
    x2a = R_("a", 224, 32)
    uid = [0]
    def lab(s_):
        uid[0] += 1; return f"L_{s_}{uid[0]}"

    def cidx(phase, sub=None):
        P.e(f"s_lshl_b32 {sidx}, {steam}, 3\ns_add_u32 {sidx}, {sidx}, {phase * 64}")
        if sub is not None: P.e(f"s_add_u32 {sidx}, {sidx}, {sub}")
        P.e(f"s_lshl_b32 {sidx}, {sidx}, 7")
    def signal(phase, sub=None):
        P.e("s_waitcnt vmcnt(0)\ns_barrier")
        L = lab("sig")
        P.e(f"s_cmp_lg_u32 {swave}, 0\ns_cbranch_scc1 {L}")
        cidx(phase, sub)
        P.e(f"v_mov_b32 {vsy[0]}, {sidx}\nv_mov_b32 {vsy[1]}, 1\ns_mov_b64 exec, 1")
        P.e(f"global_atomic_add {vsy[0]}, {vsy[1]}, {psync}", nocount=True)
        P.e(f"s_mov_b64 exec, -1\n{L}:")
    def wait(phase, target, sub=None):
        L = lab("wt"); Lp = lab("poll"); Ld = lab("pd")
        P.e(f"s_cmp_lg_u32 {swave}, 0\ns_cbranch_scc1 {L}")
        cidx(phase, sub)
        P.e(f"v_mov_b32 {vsy[0]}, {sidx}\ns_mov_b32 {st2}, {SPIN_MAX}")
        P.e(f"{Lp}:")
        P.e(f"global_load_dword {vsy[1]}, {vsy[0]}, {psync} sc1", nocount=True)
        P.e(f"s_waitcnt vmcnt(0)\nv_readfirstlane_b32 {st1}, {vsy[1]}\ns_cmp_ge_u32 {st1}, {target}\ns_cbranch_scc1 {Ld}")
        P.e(f"s_sub_u32 {st2}, {st2}, 1\ns_cmp_eq_u32 {st2}, 0\ns_cbranch_scc1 {Ld}\ns_sleep 1\ns_branch {Lp}\n{Ld}:")
        P.e(f"{L}:\ns_barrier")
    def touch(key, nbytes, ninstr, srdT, vt):
        make_srd(P, srdT, ptr[key], nbytes)
        P.e(f"s_lshl_b32 {st0}, s2, 2\ns_add_u32 {st0}, {st0}, {swave}\ns_mul_i32 {st0}, {st0}, {ninstr * 8192}\nv_lshlrev_b32 {vt[0]}, 7, {vlane}")
        for i in range(ninstr):
            P.e(f"buffer_load_dword {vt[1]}, {vt[0]}, {srdT}, {st0} offen")
            if i + 1 < ninstr: P.e(f"s_add_u32 {st0}, {st0}, 8192")

    P.e(f"s_cmp_ge_u32 s2, 256\ns_cbranch_scc1 L_end_{name}")
    P.e("s_load_dwordx8 s[4:11], s[0:1], 0")
    for k_ in ("wo", "wg", "wu", "wd", "out", "ws"): load_ptr(P, ptr[k_], k_)
    assert ptr["wg"].base == 14 and ptr["wu"].base == 16 and ptr["wo"].base == 12
    P.e(f"v_lshrrev_b32 {vsy[0]}, 6, v0\nv_and_b32 {vlane}, 63, v0\ns_nop 0\nv_readfirstlane_b32 {swave}, {vsy[0]}")
    P.e(f"s_and_b32 {sx}, s2, 7\ns_lshr_b32 {st0}, s2, 3\ns_and_b32 {steam}, {st0}, 7\ns_lshr_b32 {sjj}, s2, 6\ns_lshl_b32 {smem}, {sx}, 2\ns_add_u32 {smem}, {smem}, {sjj}")
    P.e(f"s_lshl_b32 {st0}, {steam}, 4\ns_lshl_b32 {st1}, {swave}, 2\ns_add_u32 {st0}, {st0}, {st1}\ns_lshl_b32 {st0}, {st0}, 11")
    P.e(f"v_lshlrev_b32 {vact[0]}, 4, {vlane}\nv_add_u32 {vact[0]}, {st0}, {vact[0]}\nv_add_u32 {vact[1]}, 4096, {vact[0]}")
    P.e("s_waitcnt lgkmcnt(0)")
    P.e(f"s_add_u32 {psync[0]}, {ptr['ws'][0]}, {WS_SYNC}\ns_addc_u32 {psync[1]}, {ptr['ws'][1]}, 0")
    if ts:
        P.e(f"s_lshl_b32 {st0}, s2, 8\ns_add_u32 {st0}, {st0}, {WS_TS}\ns_add_u32 {pts[0]}, {ptr['ws'][0]}, {st0}\ns_addc_u32 {pts[1]}, {ptr['ws'][1]}, 0")
    stamp("start")

    def rows_phase(kind, pre_sync=None):
        va = Alloc("v", 20, 256)
        vt = va.get(8, 4); vfa = va.get(); vxa = va.get(); vma = va.get()
        X = [va.get(8, 4) for i in range(4)]; raw = [va.get(4, 4) for i in range(4)]
        par = [[va.get(4, 4) for p in range(4)] for i in range(4)] if kind != "ln1" else None
        m1 = [va.get(8, 4) for i in range(4)]
        m2 = [va.get(8, 4) for i in range(4)] if kind != "fin" else None
        m3 = [va.get(8, 4) for i in range(4)] if kind == "ln2" else None
        srdX, srdM, srdP, srdF = srd2, srd3, srd4, srd5
        so = sp[0:4]; srow = sp[4]
        P.e(f"s_lshl_b32 {srow}, {steam}, 5\ns_add_u32 {srow}, {srow}, {smem}")
        P.e(f"v_lshrrev_b32 {vt[0]}, 6, v0\nv_lshlrev_b32 {vt[0]}, 18, {vt[0]}\nv_bfe_u32 {vt[1]}, v0, 5, 1\nv_lshlrev_b32 {vt[1]}, 10, {vt[1]}")
        P.e(f"v_bfe_u32 {vt[2]}, v0, 3, 2\nv_lshlrev_b32 {vt[2]}, 8, {vt[2]}\nv_and_b32 {vt[3]}, 7, v0\nv_lshlrev_b32 {vt[4]}, 4, {vt[3]}")
        P.e(f"v_add3_u32 {vfa}, {vt[0]}, {vt[1]}, {vt[2]}\nv_add_u32 {vfa}, {vfa}, {vt[4]}")
        P.e(f"s_lshr_b32 {st0}, {srow}, 1\ns_lshl_b32 {st0}, {st0}, 11\ns_and_b32 {st1}, {srow}, 1\ns_lshl_b32 {st1}, {st1}, 7\ns_add_u32 {st0}, {st0}, {st1}\nv_add_u32 {vfa}, {st0}, {vfa}")
        P.e(f"v_lshrrev_b32 {vt[0]}, 5, v0\nv_lshlrev_b32 {vt[0]}, 5, {vt[0]}\nv_lshrrev_b32 {vt[2]}, 6, {vt[2]}\nv_add_u32 {vt[0]}, {vt[0]}, {vt[2]}\nv_lshlrev_b32 {vma}, 2, {vt[0]}")
        P.e(f"s_lshl_b32 {st0}, {srow}, 14\nv_lshlrev_b32 {vt[3]}, 11, {vt[3]}\nv_lshlrev_b32 {vt[0]}, 1, {vt[0]}\nv_add3_u32 {vxa}, {vt[3]}, {vt[0]}, {st0}")
        make_srd(P, srdX, ptr["x"] if kind != "fin" else ptr["out"], 2048 * 1024 * 2)
        make_srd(P, srdM, ptr["ws"], 6144 * 4, WS_MODF)
        if kind != "ln1": make_srd(P, srdP, ptr["ws"], 16 * MB, WS_PO if kind == "ln2" else WS_PD)
        if kind != "fin": make_srd(P, srdF, ptr["ws"], 4 * MB, WS_H if kind == "ln1" else WS_H2)
        for i in range(4): P.e(f"s_mov_b32 {so[i]}, {i * 4 * 262144}")
        tk = []; tm = []
        if kind != "fin":
            for i in range(4):
                tk.append(P.e(f"buffer_load_dwordx2 {raw[i].sub(0,2)}, {vxa}, {srdX}, 0 offen offset:{i*512}"))
                tk.append(P.e(f"buffer_load_dwordx2 {raw[i].sub(2,2)}, {vxa}, {srdX}, 0 offen offset:{i*512 + 32}"))
        mods = {"ln1": [(m1, 1), (m2, 0)], "ln2": [(m1, 4), (m2, 3), (m3, 2)], "fin": [(m1, 5)]}[kind]
        for regs, mi in mods:
            P.e(f"s_mov_b32 {st1}, {mi*4096}")
            for i in range(4):
                tm.append(P.e(f"buffer_load_dwordx4 {regs[i].sub(0,4)}, {vma}, {srdM}, {st1} offen offset:{i*1024}"))
                tm.append(P.e(f"buffer_load_dwordx4 {regs[i].sub(4,4)}, {vma}, {srdM}, {st1} offen offset:{i*1024 + 64}"))
        if pre_sync: pre_sync()
        if kind != "ln1":
            for i in range(4):
                for p in range(4):
                    P.e(f"s_add_u32 {st0}, {so[i]}, {p*4*MB}")
                    tk.append(P.e(f"buffer_load_dwordx4 {par[i][p]}, {vfa}, {srdP}, {st0} offen{SCL}"))
        P.wait(vm=tk + tm)
        if kind != "fin":
            for i in range(4):
                for j in range(4): unpack(P, X[i][2*j], X[i][2*j+1], raw[i][j])
        else:
            for i in range(4):
                for j in range(8): P.e(f"v_accvgpr_read_b32 {X[i][j]}, {x2a[8*i+j]}")
        if kind != "ln1":
            gate = m3 if kind == "ln2" else m1
            for i in range(4):
                for j in range(4):
                    a0, a1, b0, b1 = vt[0], vt[1], vt[2], vt[3]
                    unpack(P, a0, a1, par[i][0][j])
                    for p in range(1, 4):
                        unpack(P, b0, b1, par[i][p][j])
                        P.e(f"v_add_f32 {a0}, {a0}, {b0}\nv_add_f32 {a1}, {a1}, {b1}")
                    P.e(f"v_fmac_f32 {X[i][2*j]}, {a0}, {gate[i][2*j]}\nv_fmac_f32 {X[i][2*j+1]}, {a1}, {gate[i][2*j+1]}")
        if kind == "fin":
            for i in range(4):
                for j in range(4): P.e(f"v_cvt_pk_bf16_f32 {raw[i][j]}, {X[i][2*j]}, {X[i][2*j+1]}")
                P.e(f"buffer_store_dwordx2 {raw[i].sub(0,2)}, {vxa}, {srdX}, 0 offen offset:{i*512}")
                P.e(f"buffer_store_dwordx2 {raw[i].sub(2,2)}, {vxa}, {srdX}, 0 offen offset:{i*512 + 32}")
            return
        if kind == "ln2":
            for i in range(4):
                for j in range(8): P.e(f"v_accvgpr_write_b32 {x2a[8*i+j]}, {X[i][j]}")
        vs, vtm, vl, vrd = vt[4], vt[5], vt[6], vt[7]
        P.e(f"v_lshrrev_b32 {vl}, 6, v0\nv_lshlrev_b32 {vl}, 5, {vl}\nv_and_b32 {vrd}, 7, v0\nv_lshlrev_b32 {vrd}, 2, {vrd}\nv_add_u32 {vrd}, {LDS_LN}, {vrd}\nv_add_u32 {vl}, {vl}, {vrd}")
        def block_sum(off):
            P.e(f"s_nop 1\nv_add_f32_dpp {vs}, {vs}, {vs} row_ror:8 row_mask:0xf bank_mask:0xf")
            P.e(f"v_mov_b32 {vtm}, {vs}\ns_nop 1\nv_permlane16_swap_b32 {vs}, {vtm}\ns_nop 1\nv_add_f32 {vs}, {vs}, {vtm}")
            P.e(f"v_mov_b32 {vtm}, {vs}\ns_nop 1\nv_permlane32_swap_b32 {vs}, {vtm}\ns_nop 1\nv_add_f32 {vs}, {vs}, {vtm}")
            P.e(f"ds_write_b32 {vl}, {vs} offset:{off}\ns_waitcnt lgkmcnt(0)\ns_barrier")
            P.e(f"ds_read_b32 {vt[0]}, {vrd} offset:{off}\nds_read_b32 {vt[1]}, {vrd} offset:{off+32}\nds_read_b32 {vt[2]}, {vrd} offset:{off+64}\nds_read_b32 {vt[3]}, {vrd} offset:{off+96}\ns_waitcnt lgkmcnt(0)")
            P.e(f"v_add_f32 {vt[0]}, {vt[0]}, {vt[1]}\nv_add_f32 {vt[2]}, {vt[2]}, {vt[3]}\nv_add_f32 {vs}, {vt[0]}, {vt[2]}")
        P.e(f"v_add_f32 {vs}, {X[0][0]}, {X[0][1]}")
        for i in range(4):
            for j in range(8):
                if i == 0 and j < 2: continue
                P.e(f"v_add_f32 {vs}, {vs}, {X[i][j]}")
        block_sum(0)
        P.e(f"v_mul_f32 {vs}, {f2u(1.0/1024):#x}, {vs}")
        for i in range(4):
            for j in range(8): P.e(f"v_sub_f32 {X[i][j]}, {X[i][j]}, {vs}")
        P.e(f"v_mul_f32 {vs}, {X[0][0]}, {X[0][0]}")
        for i in range(4):
            for j in range(8):
                if i == 0 and j == 0: continue
                P.e(f"v_fmac_f32 {vs}, {X[i][j]}, {X[i][j]}")
        block_sum(128)
        P.e(f"v_mov_b32 {vtm}, {f2u(1e-5):#x}\nv_fmac_f32 {vtm}, {f2u(1.0/1024):#x}, {vs}\nv_rsq_f32 {vs}, {vtm}")
        if kind == "ln1": P.e(f"s_nop 0\nv_mul_f32 {vs}, {f2u(CS):#x}, {vs}")
        for i in range(4):
            for j in range(8):
                P.e(f"v_mul_f32 {X[i][j]}, {X[i][j]}, {vs}\nv_fma_f32 {X[i][j]}, {X[i][j]}, {m1[i][j]}, {X[i][j]}")
                if kind == "ln1": P.e(f"v_fmac_f32 {X[i][j]}, {f2u(CS):#x}, {m2[i][j]}")
                else: P.e(f"v_add_f32 {X[i][j]}, {X[i][j]}, {m2[i][j]}")
            for j in range(4): P.e(f"v_cvt_pk_bf16_f32 {raw[i][j]}, {X[i][2*j]}, {X[i][2*j+1]}")
            P.e(f"buffer_store_dwordx4 {raw[i]}, {vfa}, {srdF}, {so[i]} offen{SCS}")

    def gemm128(tag, wkey, wrow, wbytes, set_col_k0, act_off, act_bytes, set_a0, NST, acc, ring, wf, lds_base, U=4):
        vdW, vtr = GA[0], GA[7]
        STG = 16 * 1056; NS = 4; Rr = len(ring)
        def setup_w():
            set_col_k0(st1, st2)
            P.e(f"v_lshrrev_b32 {vtmp[0]}, 4, {vlane}\nv_mul_u32_u24 {vtmp[1]}, {16*wrow}, {vtmp[0]}\nv_and_b32 {vtmp[2]}, 15, {vlane}\nv_lshlrev_b32 {vtmp[2]}, 4, {vtmp[2]}")
            P.e(f"v_add3_u32 {vdW}, {vtmp[1]}, {vtmp[2]}, {st1}")
            P.e(f"s_lshl_b32 {st0}, {swave}, 2\ns_add_u32 {st0}, {st0}, {st2}\ns_mul_i32 {sWoff}, {st0}, {wrow}\ns_mul_i32 {sLds}, {swave}, {4*1056}\ns_add_u32 {sLds}, {sLds}, {lds_base}")
            P.e(f"v_lshrrev_b32 {vtmp[0]}, 2, {vlane}\nv_mul_u32_u24 {vtr}, 1056, {vtmp[0]}\nv_and_b32 {vtmp[0]}, 3, {vlane}\nv_lshlrev_b32 {vtmp[0]}, 3, {vtmp[0]}\nv_add_u32 {vtr}, {vtr}, {vtmp[0]}")
            if lds_base: P.e(f"v_add_u32 {vtr}, {lds_base}, {vtr}")
            make_srd(P, srdW, ptr[wkey], wbytes)
        def setup_a():
            make_srd(P, srdA, ptr["ws"], act_bytes, act_off)
            set_a0(sAoff)
        def dma_pre(stage, i):
            if stage > 0 or i > 0: P.e(f"s_add_u32 {sWoff}, {sWoff}, {wrow if i > 0 else (64 - 4 + 1)*wrow}")
            P.e(f"s_add_u32 m0, {sLds}, {(stage % NS)*STG + i*1056}")
        def dma_fn(stage, i): return P.e(f"buffer_load_dwordx4 {vdW}, {srdW}, {sWoff} offen lds")
        act_needs_pre = lambda g, m: m == 0 and g > 0 and (g & 1) == 0
        def act_pre(g, m): P.e(f"s_add_u32 {sAoff}, {sAoff}, 262144")
        def act_fn(g, m):
            return P.e(f"buffer_load_dwordx4 {ring[g % Rr][m]}, {vact[m >> 1]}, {srdA}, {sAoff} offen offset:{(m & 1)*2048 + (g & 1)*1024}{SCL}")
        def tr_fn(G, T, rd, dst):
            stage, q = divmod(G, 2); slot = stage % NS
            return P.e(f"ds_read_b64_tr_b16 {dst}, {vtr} offset:{slot * STG + (2 * q + rd) * 256 + 32 * T}")
        C = GemmCore(P, tag, 4, 8, NST, NS, Rr, acc, ring, wf, 4, dma_fn, act_fn, tr_fn, scnt, U=U,
                     dma_pre=dma_pre, act_pre=act_pre, act_needs_pre=act_needs_pre)
        C.setup_w, C.setup_a = setup_w, setup_a
        return C
    def zero_acc(acc):
        for row in acc:
            for A in row:
                for r in range(4): P.e(f"v_mov_b32 {A[r]}, 0")
    def run_gemm(C, acc, P1):
        C.setup_a(); C.pre_a(C.R - 1)
        zero_acc(acc)
        C.start(); C.run(P1=P1)

    qacc = [[R_("v", 64 + (m * 8 + T) * 4, 4) for T in range(8)] for m in range(4)]
    ringQ = [[R_("a", 128 + (r * 4 + m) * 4, 4) for m in range(4)] for r in range(4)]
    wfQ = [R_("a", 192 + 4 * i, 4) for i in range(8)]
    KSL = 16 * 1040; VSL = 16 * 1056; W_BASE = 4 * KSL
    CQ = gemm128("q", "wq", 8192, 1024 * 8192,
                 lambda c_, k_: P.e(f"s_lshl_b32 {c_}, {smem}, 8\ns_mov_b32 {k_}, 0"),
                 WS_H, 4 * MB, lambda a_: P.e(f"s_mov_b32 {a_}, 0"), 16, qacc, ringQ, wfQ, W_BASE)
    pacc = [[R_("v", 64 + (m * 8 + T) * 4, 4) for T in range(8)] for m in range(4)]
    ringP = [[R_("a", (r * 4 + m) * 4, 4) for m in range(4)] for r in range(4)]
    wfP = [R_("a", 64 + 4 * i, 4) for i in range(8)]
    def proj(tag, wkey, K, act_off):
        KL = K // 4; NST = KL // 64
        def colk(c_, k_):
            P.e(f"s_and_b32 {c_}, {sx}, 1\ns_lshl_b32 {c_}, {c_}, 2\ns_add_u32 {c_}, {c_}, {sjj}\ns_lshl_b32 {c_}, {c_}, 8\ns_lshr_b32 {k_}, {sx}, 1\ns_mul_i32 {k_}, {k_}, {KL}")
        def a0(a_): P.e(f"s_lshr_b32 {a_}, {sx}, 1\ns_mul_i32 {a_}, {a_}, {NST*262144}")
        return gemm128(tag, wkey, 2048, K * 2048, colk, act_off, 2048 * K * 2, a0, NST, pacc, ringP, wfP, 0)
    CO = proj("o", "wo", 4096, WS_O)
    CD = proj("d", "wd", 3584, WS_ACT)
    def proj_epilogue(ws_off):
        make_srd(P, srd2, ptr["ws"], 16 * MB, ws_off)
        P.e(f"s_lshr_b32 {st0}, {sx}, 1\ns_lshl_b32 {st0}, {st0}, 22\ns_and_b32 {st1}, {sx}, 1\ns_lshl_b32 {st1}, {st1}, 2\ns_add_u32 {st1}, {st1}, {sjj}\ns_lshl_b32 {st1}, {st1}, 19\ns_add_u32 {st0}, {st0}, {st1}")
        for m in range(4):
            for kb in range(4):
                A0, A1 = pacc[m][2 * kb], pacc[m][2 * kb + 1]
                P.e(f"v_cvt_pk_bf16_f32 {A0[0]}, {A0[0]}, {A0[1]}\nv_cvt_pk_bf16_f32 {A0[1]}, {A0[2]}, {A0[3]}\nv_cvt_pk_bf16_f32 {A0[2]}, {A1[0]}, {A1[1]}\nv_cvt_pk_bf16_f32 {A0[3]}, {A1[2]}, {A1[3]}")
                P.e(f"s_add_u32 {st1}, {st0}, {(kb >> 1)*262144}")
                P.e(f"buffer_store_dwordx4 {A0}, {vact[m >> 1]}, {srd2}, {st1} offen offset:{(m & 1)*2048 + (kb & 1)*1024}{SCS}")

    WROW = 7168; REG_OFF = 64 * 224; SLOT = 2 * REG_OFF
    uacc = [[R_("v", 32 + (m * 14 + T) * 4, 4) for T in range(14)] for m in range(4)]
    ringU = [[R_("a", (r * 4 + m) * 4, 4) for m in range(4)] for r in range(4)]
    wfU = [R_("a", 64 + 4 * i, 4) for i in range(8)]
    vdma = GA.sub(0, 7); vtrU = GA.sub(7, 3)
    def ku_setup_w():
        P.e(f"s_and_b32 {st0}, {swave}, 1\ns_mul_i32 {st0}, {st0}, 448\ns_mul_i32 {st1}, {smem}, 224\ns_and_b32 {st2}, {smem}, 1\ns_lshl_b32 {st2}, {st2}, 1")
        for t in range(7):
            P.e(f"v_add_u32 {vtmp[0]}, {st0}, {vlane}")
            if t: P.e(f"v_add_u32 {vtmp[0]}, {64*t}, {vtmp[0]}")
            P.e(f"v_mul_u32_u24 {vtmp[1]}, 4682, {vtmp[0]}\nv_lshrrev_b32 {vtmp[1]}, 16, {vtmp[1]}")
            P.e(f"v_mul_u32_u24 {vtmp[2]}, 14, {vtmp[1]}\nv_sub_u32 {vtmp[2]}, {vtmp[0]}, {vtmp[2]}")
            P.e(f"v_add_u32 {vtmp[2]}, {st2}, {vtmp[2]}\nv_subrev_u32 {vtmp[3]}, 14, {vtmp[2]}\nv_cmp_gt_u32 vcc, 14, {vtmp[2]}\nv_cndmask_b32 {vtmp[2]}, {vtmp[3]}, {vtmp[2]}, vcc")
            P.e(f"v_mul_u32_u24 {vtmp[1]}, {WROW}, {vtmp[1]}\nv_lshlrev_b32 {vtmp[2]}, 4, {vtmp[2]}")
            P.e(f"v_add3_u32 {vdma[t]}, {vtmp[1]}, {vtmp[2]}, {st1}")
        P.e(f"s_lshr_b32 {st0}, {swave}, 1\ns_mul_i32 {st0}, {st0}, {REG_OFF}\ns_and_b32 {st1}, {swave}, 1\ns_mul_i32 {st1}, {st1}, 7168\ns_add_u32 {sLds}, {st0}, {st1}")
        P.e(f"v_lshrrev_b32 {vtmp[0]}, 2, {vlane}\nv_mul_u32_u24 {vtrU[0]}, 224, {vtmp[0]}\nv_and_b32 {vtmp[0]}, 3, {vlane}\nv_lshlrev_b32 {vtmp[0]}, 3, {vtmp[0]}")
        P.e(f"v_add_u32 {vtrU[0]}, {vtrU[0]}, {vtmp[0]}\nv_add_u32 {vtrU[1]}, {2*SLOT}, {vtrU[0]}")
        P.e(f"s_cmp_ge_u32 {swave}, 2\ns_cselect_b32 {srdW[0]}, {ptr['wu'][0]}, {ptr['wg'][0]}\ns_cselect_b32 {srdW[1]}, {ptr['wu'][1]}, {ptr['wg'][1]}")
        P.e(f"s_mov_b32 {srdW[2]}, {1024*WROW}\ns_mov_b32 {srdW[3]}, 0x20000\ns_mov_b32 {sWoff}, 0")
    def ku_dma_pre(stage, t):
        if t == 0 and stage > 0: P.e(f"s_add_u32 {sWoff}, {sWoff}, {64*WROW}")
        P.e(f"s_add_u32 m0, {sLds}, {(stage % 4)*SLOT + t*1024}")
    def ku_dma(stage, t): return P.e(f"buffer_load_dwordx4 {vdma[t]}, {srdW}, {sWoff} offen lds")
    def ku_act(g, m):
        return P.e(f"buffer_load_dwordx4 {ringU[g % 4][m]}, {vact[m >> 1]}, {srdA}, {sAoff} offen offset:{(m & 1)*2048 + (g & 1)*1024}{SCL}")
    def ku_tr(G, T, rd, dst):
        stage, q = divmod(G, 2); slot = stage % 4
        off = (slot & 1) * SLOT + (T & 1) * REG_OFF + (32 * q + 16 * rd) * 224 + 32 * (T >> 1)
        return P.e(f"ds_read_b64_tr_b16 {dst}, {vtrU[slot >> 1]} offset:{off}")
    CU = GemmCore(P, "u", 4, 14, 16, 4, 4, uacc, ringU, wfU, 7, ku_dma, ku_act, ku_tr, scnt, U=4,
                  dma_pre=ku_dma_pre, act_pre=lambda g, m: P.e(f"s_add_u32 {sAoff}, {sAoff}, 262144"), act_needs_pre=lambda g, m: m == 0 and g > 0 and (g & 1) == 0)
    CU.setup_w = ku_setup_w
    def ku_setup_a():
        make_srd(P, srdA, ptr["ws"], 4 * MB, WS_H2); P.e(f"s_mov_b32 {sAoff}, 0")
    CU.setup_a = ku_setup_a
    def ku_epilogue():
        make_srd(P, srd2, ptr["ws"], 2048 * 3584 * 2, WS_ACT)
        tmp = R_("v", 20, 8)
        par = sp[0]; sT = sp[1]; so_ = sp[2]
        P.e(f"s_and_b32 {par}, {smem}, 1\ns_mul_i32 {sT}, {smem}, 7\ns_add_u32 {sT}, {sT}, {par}\ns_lshr_b32 {sT}, {sT}, 1")
        def silu(m, t, dst2):
            Gt, Ut = uacc[m][2 * t], uacc[m][2 * t + 1]
            for j in range(4): P.e(f"v_mul_f32 {tmp[j]}, {f2u(-LOG2E):#x}, {Gt[j]}")
            for j in range(4): P.e(f"v_exp_f32 {tmp[j]}, {tmp[j]}")
            for j in range(4): P.e(f"v_add_f32 {tmp[j]}, 1.0, {tmp[j]}")
            for j in range(4): P.e(f"v_rcp_f32 {tmp[j]}, {tmp[j]}")
            for j in range(4): P.e(f"v_mul_f32 {Gt[j]}, {Gt[j]}, {Ut[j]}")
            for j in range(4): P.e(f"v_mul_f32 {Gt[j]}, {Gt[j]}, {tmp[j]}")
            for j in range(2): P.e(f"v_cvt_pk_bf16_f32 {dst2[j]}, {Gt[2*j]}, {Gt[2*j+1]}")
        for j in range(3):
            P.e(f"s_add_u32 {st0}, {sT}, {j}\ns_lshr_b32 {so_}, {st0}, 1\ns_lshl_b32 {so_}, {so_}, 18\ns_and_b32 {st0}, {st0}, 1\ns_lshl_b32 {st0}, {st0}, 10\ns_add_u32 {so_}, {so_}, {st0}")
            for m in range(4):
                D = uacc[m][4 * j + 1]
                silu(m, 2 * j, D.sub(0, 2))
                silu(m, 2 * j + 1, D.sub(2, 2))
                P.e(f"buffer_store_dwordx4 {D}, {vact[m >> 1]}, {srd2}, {so_} offen offset:{(m & 1)*2048}{SCS}")
        P.e(f"s_mul_i32 {st0}, {smem}, 7\ns_add_u32 {st1}, {st0}, 6\ns_cmp_eq_u32 {par}, 0\ns_cselect_b32 {st0}, {st1}, {st0}")
        P.e(f"s_lshr_b32 {st1}, {st0}, 2\ns_lshl_b32 {so_}, {st1}, 18\ns_bfe_u32 {st1}, {st0}, 0x10001\ns_lshl_b32 {st1}, {st1}, 10\ns_add_u32 {so_}, {so_}, {st1}\ns_and_b32 {st0}, {st0}, 1\ns_lshl_b32 {st0}, {st0}, 3\ns_add_u32 {so_}, {so_}, {st0}")
        for m in range(4):
            D = uacc[m][13]
            silu(m, 6, D.sub(0, 2))
            P.e(f"buffer_store_dwordx2 {D.sub(0,2)}, {vact[m >> 1]}, {srd2}, {so_} offen offset:{(m & 1)*2048}{SCS}")

    def qa_phase():
        va = Alloc("v", 20, 32)
        vdKV = va.get(); vkr = va.get(2); vvr = va.get(2); vor = va.get(); vx = R_("v", 52, 4); et = R_("v", 56, 8)
        negm = [R_("v", 32 + 4 * m, 4) for m in range(4)]; ones = R_("v", 48, 4)
        S = [[[R_("v", 64 + b * 64 + (kt * 4 + m) * 4, 4) for m in range(4)] for kt in range(4)] for b in range(2)]
        Pb = [[[R_("v", 192 + b * 32 + (ks * 4 + m) * 4, 4) for m in range(4)] for ks in range(2)] for b in range(2)]
        O = [[R_("a", (dt * 4 + m) * 4, 4) for m in range(4)] for dt in range(8)]
        Q = [[R_("a", 128 + (m * 4 + s_) * 4, 4) for s_ in range(4)] for m in range(4)]
        lac = [R_("a", 192 + 4 * m, 4) for m in range(4)]
        kfr = [R_("a", 208 + 4 * i, 4) for i in range(4)]
        vfr = [R_("a", 224 + 4 * i, 4) for i in range(8)]
        srdK, srdV, srdO = srd2, srd3, srd4
        sKoff, sVoff, sKm, sVm, sKc, sVc = sp[0], sp[1], sp[2], sp[3], sp[4], sp[5]
        def kv_setup():
            P.e(f"v_lshrrev_b32 {vtmp[0]}, 4, {vlane}\nv_lshlrev_b32 {vtmp[1]}, 12, {vtmp[0]}\nv_and_b32 {vtmp[2]}, 15, {vlane}\nv_lshlrev_b32 {vtmp[2]}, 4, {vtmp[2]}\nv_add_u32 {vdKV}, {vtmp[1]}, {vtmp[2]}")
            P.e(f"s_mul_i32 {sKm}, {swave}, {4*1040}\ns_mul_i32 {sVm}, {swave}, {4*1056}\ns_add_u32 {sVm}, {sVm}, {W_BASE}")
            P.e(f"s_lshl_b32 {sKc}, {sKm}, 1\ns_add_u32 {sKc}, {sKc}, {2*KSL}\ns_lshl_b32 {sVc}, {sVm}, 1\ns_add_u32 {sVc}, {sVc}, {2*VSL}")
            P.e(f"s_lshr_b32 {st0}, {smem}, 3\ns_lshl_b32 {st0}, {st0}, 11\ns_lshl_b32 {st1}, {swave}, 2\ns_add_u32 {st0}, {st0}, {st1}\ns_add_u32 {st0}, {st0}, 1536\ns_lshl_b32 {sKoff}, {st0}, 8\ns_mov_b32 {sVoff}, {sKoff}")
            P.e(f"v_lshrrev_b32 {vtmp[0]}, 2, {vlane}\nv_mul_u32_u24 {vvr[0]}, 1056, {vtmp[0]}\nv_and_b32 {vtmp[0]}, 3, {vlane}\nv_lshlrev_b32 {vtmp[0]}, 3, {vtmp[0]}\nv_add_u32 {vvr[0]}, {vvr[0]}, {vtmp[0]}")
            P.e(f"v_add_u32 {vvr[0]}, {W_BASE}, {vvr[0]}\nv_add_u32 {vvr[1]}, {2*VSL}, {vvr[0]}")
            P.e(f"v_and_b32 {vtmp[0]}, 15, {vlane}\nv_mul_u32_u24 {vkr[1]}, 1040, {vtmp[0]}\nv_lshrrev_b32 {vtmp[0]}, 4, {vlane}\nv_lshlrev_b32 {vtmp[0]}, 3, {vtmp[0]}\nv_add_u32 {vkr[1]}, {vkr[1]}, {vtmp[0]}\nv_add_u32 {vkr[0]}, {2*KSL}, {vkr[1]}")
            make_srd(P, srdK, ptr["kc"], 4 * 2048 * 256); make_srd(P, srdV, ptr["vc"], 4 * 2048 * 256)
            P.e(f"s_lshr_b32 {st0}, {smem}, 3\ns_add_u32 {st0}, {st0}, 1\ns_lshl_b32 {srdK[2]}, {st0}, 19\ns_mov_b32 {srdV[2]}, {srdK[2]}")
            make_srd(P, srdO, ptr["ws"], 2048 * 4096 * 2, WS_O)
        ktok = {}; vtok = {}
        def kdma_pre(c_, i):
            if c_ > 0 or i > 0: P.e(f"s_add_u32 {sKoff}, {sKoff}, {256 if i > 0 else (64 - 3)*256}")
            if i == 0 and c_ > 0 and c_ % 2 == 0: P.e(f"s_sub_u32 {sKm}, {sKc}, {sKm}")
            P.e(f"s_add_u32 m0, {sKm}, {(c_ & 1)*KSL + i*1040}")
        def kdma(c_, i): ktok.setdefault(c_, []).append(P.e(f"buffer_load_dwordx4 {vdKV}, {srdK}, {sKoff} offen lds"))
        def vdma_pre(c_, i):
            if c_ > 0 or i > 0: P.e(f"s_add_u32 {sVoff}, {sVoff}, {256 if i > 0 else (64 - 3)*256}")
            if i == 0 and c_ > 0 and c_ % 2 == 0: P.e(f"s_sub_u32 {sVm}, {sVc}, {sVm}")
            P.e(f"s_add_u32 m0, {sVm}, {(c_ & 1)*VSL + i*1056}")
        def vdma(c_, i): vtok.setdefault(c_, []).append(P.e(f"buffer_load_dwordx4 {vdKV}, {srdV}, {sVoff} offen lds"))
        pair = {"k": 1, "v": 0}
        kv_setup()
        extras = {}
        zl = [f"v_accvgpr_write_b32 {O[dt][m][r]}, 0" for dt in range(8) for m in range(4) for r in range(4)]
        for k_, G in enumerate(range(24, 32)):
            extras[G] = [(2 * j, z) for j, z in enumerate(zl[16 * k_:16 * k_ + 16])]
        for c_ in range(3):
            G = 24 + 2 * c_
            for i in range(4):
                extras[G].append((4 + 7 * i, (lambda c_=c_, i=i: kdma_pre(c_, i)))); extras[G].append((5 + 7 * i, (lambda c_=c_, i=i: kdma(c_, i))))
            extras[G].sort(key=lambda t: t[0])
        CQ.extras = extras
        run_gemm(CQ, qacc, 0)
        stamp('Qgemm')
        for m in range(4):
            for s_ in range(4):
                for hf in range(2):
                    A = qacc[m][2 * s_ + hf]
                    P.e(f"v_cvt_pk_bf16_f32 {et[2*hf]}, {A[0]}, {A[1]}\nv_cvt_pk_bf16_f32 {et[2*hf+1]}, {A[2]}, {A[3]}")
                for j in range(4): P.e(f"v_accvgpr_write_b32 {Q[m][s_][j]}, {et[j]}")
        for m in range(4):
            for r in range(4): P.e(f"v_mov_b32 {negm[m][r]}, 0\nv_accvgpr_write_b32 {lac[m][r]}, 0")
        for r in range(4): P.e(f"v_mov_b32 {ones[r]}, 0x3f803f80")
        P.wait(vm=ktok[0] + ktok[1], lg0=True); P.e("s_barrier")
        kf_tok = {}; vf_tok = {}
        def kread(c_, f, p):
            kt, s_ = divmod(f, 4)
            off = (c_ & 1) * KSL + kt * 256 + 64 * s_ + 32 * p
            reg = vkr[0] if ((c_ >> 1) & 1) == pair["k"] else vkr[1]
            kf_tok.setdefault((c_, f), []).append(P.e(f"ds_read_b64 {kfr[f % 4].sub(2*p, 2)}, {reg} offset:{off}"))
        def vread(c_, f, rd):
            ks, dt = divmod(f, 8)
            off = (c_ & 1) * VSL + (2 * ks + rd) * 256 + 32 * dt
            reg = vvr[0] if ((c_ >> 1) & 1) == pair["v"] else vvr[1]
            vf_tok.setdefault((c_, f), []).append(P.e(f"ds_read_b64_tr_b16 {vfr[f % 8].sub(2*rd, 2)}, {reg} offset:{off}"))
        KLA = 3; VLA = 6
        def qk_mfmas(c_):
            out = []; b = c_ & 1
            for f in range(16):
                kt, s_ = divmod(f, 4)
                ms = range(4) if f % 2 == 0 else range(3, -1, -1)
                for j, m in enumerate(ms):
                    cin = negm[m] if s_ == 0 else S[b][kt][m]
                    out.append((f"v_mfma_f32_16x16x32_bf16 {S[b][kt][m]}, {kfr[f % 4]}, {Q[m][s_]}, {cin}", ("k", c_, f) if j == 0 else None))
            return out
        def pv_mfmas(c_):
            out = []; b = c_ & 1
            for ks in range(2):
                for dt in range(8):
                    f = ks * 8 + dt
                    ms = range(4) if f % 2 == 0 else range(3, -1, -1)
                    for j, m in enumerate(ms):
                        out.append((f"v_mfma_f32_16x16x32_bf16 {O[dt][m]}, {vfr[f % 8]}, {Pb[b][ks][m]}, {O[dt][m]}", ("v", c_, f) if j == 0 else None))
                for m in range(4):
                    out.append((f"v_mfma_f32_16x16x32_bf16 {lac[m]}, {ones}, {Pb[b][ks][m]}, {lac[m]}", None))
            return out
        def softmax_ops(c_):
            b = c_ & 1; ops = []; t = 0; first = True
            for ks in range(2):
                for m in range(4):
                    for hf in range(2):
                        Sx = S[b][2 * ks + hf][m]; Px = Pb[b][ks][m]
                        e = [et[(t + j) % 8] for j in range(4)]; t += 4
                        ops += [f"v_exp_f32 {e[0]}, {Sx[0]}", f"v_exp_f32 {e[1]}, {Sx[1]}", f"v_exp_f32 {e[2]}, {Sx[2]}",
                                f"v_cvt_pk_bf16_f32 {Px[2*hf]}, {e[0]}, {e[1]}", f"v_exp_f32 {e[3]}, {Sx[3]}"]
                        ops.append(("late", f"v_cvt_pk_bf16_f32 {Px[2*hf+1]}, {e[2]}, {e[3]}"))
                        if hf == 1:
                            if first: ops.append(("late", f"v_or_b32 {vor}, {Px[0]}, {Px[1]}")); first = False
                            else: ops.append(("late", f"v_or3_b32 {vor}, {vor}, {Px[0]}, {Px[1]}"))
                            ops.append(("late", f"v_or3_b32 {vor}, {vor}, {Px[2]}, {Px[3]}"))
            out = []; pend = []
            for o_ in ops:
                if isinstance(o_, tuple): pend.append(o_[1])
                else:
                    out.append(o_)
                    if pend: out += pend; pend = []
            return out + pend
        def cost(x):
            if callable(x): return 4
            return 8 if x.startswith("v_exp") else 4
        def iteration(i, do_qk, do_pv, do_sm, kd=None, vd=None, bar=True, tail=False, extra_vm=()):
            mf = []
            if do_qk: mf += qk_mfmas(i + 1)
            if do_pv: mf += pv_mfmas(i - 1)
            nm = len(mf)
            gaps = [[] for _ in range(nm)]; pre = [[] for _ in range(nm)]
            for idx, (txt, tag) in enumerate(mf):
                if tag is None: continue
                kind, c_, f = tag
                if kind == "k":
                    if f % 2 == 0: pre[idx].append(lambda c_=c_, f=f: P.wait(lg=kf_tok[(c_, f + 1)]) if True else None)
                    fn = f + KLA
                    if fn < 16:
                        gaps[idx].append(lambda c_=c_, fn=fn: kread(c_, fn, 0)); gaps[idx + 1].append(lambda c_=c_, fn=fn: kread(c_, fn, 1))
                    if do_pv and f >= 13:
                        for u in range(2):
                            vf = (f - 13) * 2 + u
                            gaps[idx + 2].append(lambda vf=vf: vread(i - 1, vf, 0)) if u == 0 else gaps[idx + 3].append(lambda vf=vf: vread(i - 1, vf, 0))
                            gaps[idx + 2].append(lambda vf=vf: vread(i - 1, vf, 1)) if u == 0 else gaps[idx + 3].append(lambda vf=vf: vread(i - 1, vf, 1))
                else:
                    if f % 2 == 0: pre[idx].append(lambda c_=c_, f=f: P.wait(lg=vf_tok[(c_, min(f + 1, 15))]))
                    fn = f + VLA
                    if fn < 16:
                        gaps[idx].append(lambda c_=c_, fn=fn: vread(c_, fn, 0)); gaps[idx + 1].append(lambda c_=c_, fn=fn: vread(c_, fn, 1))
            if bar:
                bpos = nm - 10
                def dobar():
                    tk = []
                    if not tail: tk += ktok[i + 2]
                    if i in vtok: tk += vtok[i]
                    P.wait(vm=tk); P.e("s_barrier")
                pre[bpos].append(dobar)
                if not tail:
                    for f in range(KLA):
                        gaps[bpos + 3 * f].append(lambda f=f: kread(i + 2, f, 0)); gaps[bpos + 3 * f + 1].append(lambda f=f: kread(i + 2, f, 1))
                else:
                    for f in range(VLA):
                        gaps[bpos + f].append(lambda f=f: (vread(i, f, 0), vread(i, f, 1)))
            dl = []
            if kd is not None:
                for u in range(4): dl.append((lambda u=u: kdma_pre(kd, u), lambda u=u: kdma(kd, u)))
            if vd is not None:
                for u in range(4): dl.append((lambda u=u: vdma_pre(vd, u), lambda u=u: vdma(vd, u)))
            for x in extra_vm: dl.append(x)
            for k_, (a_, b_) in enumerate(dl):
                pos = 6 + (k_ * (nm - 30)) // max(1, len(dl))
                if a_: gaps[pos].append(a_)
                gaps[pos + 1].append(b_)
            if do_sm:
                ops = softmax_ops(i)
                fixed = [sum(cost(x) for x in gaps[g]) + 4 * len(pre[g]) for g in range(nm)]
                tot = sum(fixed) + sum(cost(x) for x in ops)
                per = tot / (nm - 1)
                acc_ = 0.0; k_ = 0
                for g in range(nm - 1):
                    acc_ += per - fixed[g]
                    while k_ < len(ops) and acc_ >= cost(ops[k_]) - 2:
                        gaps[g].append(ops[k_]); acc_ -= cost(ops[k_]); k_ += 1
                while k_ < len(ops): gaps[nm - 2].append(ops[k_]); k_ += 1
            do = lambda x: x() if callable(x) else P.e(x)
            for idx, (txt, tag) in enumerate(mf):
                for x in pre[idx]: do(x)
                P.e(txt)
                for x in gaps[idx]: do(x)
        def check(b, tag):
            P.e(f"v_and_b32 {vx[0]}, 0x40004000, {vor}\nv_cmp_ne_u32 vcc, 0, {vx[0]}")
            P.e(f"s_cbranch_vccz L_back{tag}_{name}\ns_call_b64 {sret}, L_rare{b}_{name}\nL_back{tag}_{name}:")
        def allmax4(reg, t):
            P.e(f"v_mov_b32 {t}, {reg}\ns_nop 1\nv_permlane32_swap_b32 {reg}, {t}\ns_nop 1\nv_max_f32 {reg}, {reg}, {t}")
            P.e(f"v_mov_b32 {t}, {reg}\ns_nop 1\nv_permlane16_swap_b32 {reg}, {t}\ns_nop 1\nv_max_f32 {reg}, {reg}, {t}")
        def rescale(b, first):
            P.e("s_nop 15")
            for m in range(4):
                d, t, sc = vx[0], vx[1], vx[2]
                vals = [S[b][kt][m][r] for kt in range(4) for r in range(4)]
                P.e(f"v_max3_f32 {d}, {vals[0]}, {vals[1]}, {vals[2]}")
                for j in range(3, 15, 2): P.e(f"v_max3_f32 {d}, {d}, {vals[j]}, {vals[j+1]}")
                P.e(f"v_max_f32 {d}, {d}, {vals[15]}")
                allmax4(d, t)
                P.e(f"v_add_f32 {d}, {f2u(QBIAS):#x}, {d}")
                if not first: P.e(f"v_max_f32 {d}, 0, {d}")
                for kt in range(4):
                    for r in range(4):
                        P.e(f"v_sub_f32 {S[b][kt][m][r]}, {S[b][kt][m][r]}, {d}")
                        if not first: P.e(f"v_sub_f32 {S[1-b][kt][m][r]}, {S[1-b][kt][m][r]}, {d}")
                for r in range(4): P.e(f"v_sub_f32 {negm[m][r]}, {negm[m][r]}, {d}")
                if not first:
                    P.e(f"v_sub_f32 {sc}, 0, {d}\nv_exp_f32 {sc}, {sc}\ns_nop 0")
                    for A in [O[dt][m] for dt in range(8)] + [lac[m]]:
                        for r in range(4):
                            P.e(f"v_accvgpr_read_b32 {t}, {A[r]}\ns_nop 0\nv_mul_f32 {t}, {t}, {sc}\nv_accvgpr_write_b32 {A[r]}, {t}")
            if not first:
                for o_ in softmax_ops(b): P.e(o_)
                P.e("s_nop 1")
        def rare():
            for b in range(2):
                P.e(f"L_rare{b}_{name}:"); rescale(b, False); P.e(f"s_setpc_b64 {sret}")
        for f in range(KLA): kread(0, f, 0); kread(0, f, 1)
        vq = [(0, u) for u in range(4)]
        for idx, (txt, tag) in enumerate(qk_mfmas(0)):
            if tag: P.wait(lg=kf_tok[(0, tag[2])])
            P.e(txt)
            if tag and tag[2] + KLA < 16: kread(0, tag[2] + KLA, 0); kread(0, tag[2] + KLA, 1)
            if idx % 8 == 5 and vq:
                c_, u = vq.pop(0); vdma_pre(c_, u); P.e("s_nop 0"); vdma(c_, u)
        for f in range(KLA): kread(1, f, 0); kread(1, f, 1)
        rescale(0, True)
        P.e("s_barrier")
        tl = []
        stamp('qk0')
        iteration(0, True, False, True, kd=3, vd=1); check(0, "p")
        def body(it):
            i = 1 + 2 * it
            iteration(i, True, True, True, kd=i + 3, vd=i + 1); check(1, "a")
            iteration(i + 1, True, True, True, kd=i + 4, vd=i + 2); check(0, "b")
            P.e(f"v_swap_b32 {vkr[0]}, {vkr[1]}\nv_swap_b32 {vvr[0]}, {vvr[1]}")
            pair["k"] ^= 1; pair["v"] ^= 1
        P.loop(f"L_loop_attn", 3, body, scnt)
        stamp('loop')
        for f in range(VLA): vread(6, f, 0); vread(6, f, 1)
        iteration(7, False, True, True, tail=True); check(1, "c")
        iteration(8, False, True, False, bar=False)
        stamp('attn')
        P.e(f"s_lshl_b32 {st0}, {smem}, 19\ns_nop 7")
        for m in range(4):
            rl = vx[0]
            P.e(f"v_accvgpr_read_b32 {rl}, {lac[m][0]}\ns_nop 0\nv_rcp_f32 {rl}, {rl}")
            for kb in range(4):
                tt = [R_("v", 64 + ((m * 4 + kb) % 8) * 8 + j) for j in range(8)]
                for hf in range(2):
                    for r in range(4): P.e(f"v_accvgpr_read_b32 {tt[4*hf+r]}, {O[2*kb+hf][m][r]}")
                for j in range(8): P.e(f"v_mul_f32 {tt[j]}, {tt[j]}, {rl}")
                for j in range(4): P.e(f"v_cvt_pk_bf16_f32 {tt[j]}, {tt[2*j]}, {tt[2*j+1]}")
                P.e(f"s_add_u32 {st1}, {st0}, {(kb >> 1)*262144}")
                P.e(f"buffer_store_dwordx4 {R_('v', tt[0].base, 4)}, {vact[m >> 1]}, {srdO}, {st1} offen offset:{(m & 1)*2048 + (kb & 1)*1024}{SCS}")
        return rare

    def ln1_pre():
        CQ.setup_w(); CQ.pre_w(2)
        if o["touch"]:
            touch("wq", 8 * MB, 1, srd4, vtmp)
    rows_phase("ln1", pre_sync=ln1_pre)
    stamp("ln1")
    signal(PH_LN1)
    if o["touch"]: touch("wo", 8 * MB, 1, srd4, vtmp)
    wait(PH_LN1, 32)
    stamp("sync1")
    rare = qa_phase()
    P.e(f"s_lshr_b32 {sp[10]}, {smem}, 3")
    stamp("qaepi")
    signal(PH_QA, sp[10])
    stamp("sigQA")
    CO.setup_w(); CO.pre_w(2)
    if o["touch"]:
        touch("wg", 1024 * 7168, 1, srd4, vtmp); touch("wu", 1024 * 7168, 1, srd4, vtmp)
    P.e(f"s_lshr_b32 {sp[10]}, {sx}, 1")
    wait(PH_QA, 8, sp[10])
    stamp("syncQA")
    run_gemm(CO, pacc, 0)
    stamp("Omain")
    proj_epilogue(WS_PO)
    signal(PH_O)
    stamp("sigO")
    def ln2_pre():
        CU.setup_w(); CU.pre_w(2)
        if o["touch"]: touch("wd", 3584 * 2048, 1, srd2 if False else srdA, vtmp)
        wait(PH_O, 32)
        stamp("syncO")
    rows_phase("ln2", pre_sync=ln2_pre)
    stamp("ln2")
    signal(PH_LN2)
    stamp("sigLN2")
    wait(PH_LN2, 32)
    stamp("syncLN2")
    run_gemm(CU, uacc, 0)
    stamp("KUmain")
    P.e("s_nop 7")
    ku_epilogue()
    stamp("KUepi")
    P.e(f"s_lshr_b32 {sp[10]}, {smem}, 3")
    signal(PH_KU, sp[10])
    stamp("sigKU")
    CD.setup_w(); CD.pre_w(2)
    P.e(f"s_lshr_b32 {sp[10]}, {sx}, 1")
    wait(PH_KU, 8, sp[10])
    stamp("syncKU")
    run_gemm(CD, pacc, 0)
    stamp("Dmain")
    proj_epilogue(WS_PD)
    signal(PH_D)
    stamp("sigD")
    rows_phase("fin", pre_sync=lambda: (wait(PH_D, 32), stamp("syncD")))
    if ts:
        P.e("s_waitcnt vmcnt(0)"); stamp("end")
    P.e("s_endpgm")
    rare()
    P.e(f"L_end_{name}:\ns_endpgm")
    lines, nfix = fix_hazards(P.lines()); check_m0(lines)
    gen_mega.names = names
    return name, lines, 256, 256, 102, LDS_TOTAL
```

```python
import re

def v(i): return f"v{i}"
def a(i): return f"a{i}"
def s(i): return f"s{i}"
def vr(i, n): return f"v[{i}:{i+n-1}]" if n > 1 else f"v{i}"
def ar(i, n): return f"a[{i}:{i+n-1}]" if n > 1 else f"a{i}"
def sr(i, n): return f"s[{i}:{i+n-1}]" if n > 1 else f"s{i}"

class R_:
    def __init__(self, f, base, n=1): self.f, self.base, self.n = f, base, n
    def __getitem__(self, i):
        if isinstance(i, slice):
            st = i.start or 0; en = i.stop if i.stop is not None else self.n
            assert 0 <= st < en <= self.n, (st, en, self.n)
            return R_(self.f, self.base + st, en - st)
        assert 0 <= i < self.n, (i, self.n)
        return R_(self.f, self.base + i, 1)
    def sub(self, off, n): return self[off:off + n]
    def __str__(self): return f"{self.f}[{self.base}:{self.base+self.n-1}]" if self.n > 1 else f"{self.f}{self.base}"
    __repr__ = __str__
    def __format__(self, spec): return str(self)

class Alloc:
    def __init__(self, f, start, limit): self.f, self.cur, self.limit, self.hi = f, start, limit, start
    def get(self, n=1, align=1):
        b = (self.cur + align - 1) // align * align
        self.cur = b + n
        assert self.cur <= self.limit, f"out of {self.f} regs: need {self.cur} > {self.limit}"
        self.hi = max(self.hi, self.cur)
        return R_(self.f, b, n)

class Ins:
    __slots__ = ("text", "kind", "tok", "wvm", "wlg", "site", "cls")
    def __init__(self, text, kind, tok=None, wvm=None, wlg=None):
        self.text, self.kind, self.tok, self.wvm, self.wlg = text, kind, tok, wvm, wlg
        self.site = None

def classify(text):
    op = text.split()[0]
    if op.endswith(":"): return "label"
    if op.startswith("v_mfma"): return "mfma"
    if op.startswith(("buffer_", "global_", "flat_")): return "vmem"
    if op.startswith("ds_"): return "ds"
    if op.startswith(("s_load", "s_buffer_load", "s_memtime", "s_memrealtime")): return "smem"
    if op == "s_waitcnt": return "wait"
    if op == "s_barrier": return "barrier"
    if op.startswith(("s_branch", "s_cbranch", "s_endpgm", "s_setpc", "s_swappc", "s_call")): return "branch"
    if op.startswith("s_"): return "salu"
    if op.startswith("v_"): return "valu"
    if op.startswith("."): return "dir"
    raise ValueError(text)

class Tok:
    def __init__(self, kind): self.kind = kind; self.idx = None

class Prog:
    def __init__(self):
        self.items = []
        self.cur = self.items
        self.loopsites = None
    def e(self, text, nocount=False):
        last = None
        for line in text.strip().split("\n"):
            line = line.strip()
            if not line or line.startswith(";"): continue
            k = classify(line)
            ins = Ins(line, k)
            if nocount and k in ("vmem", "ds"): ins.kind = "nc"
            elif k in ("vmem", "ds", "smem"):
                ins.tok = Tok(k)
                last = ins.tok
            self.cur.append(ins)
        return last
    def wait(self, vm=None, lg=None, vm0=False, lg0=False):
        ins = Ins("s_waitcnt", "wait")
        f = lambda t: [] if t is None else (list(t) if isinstance(t, (list, tuple)) else [t])
        ins.wvm = "all" if vm0 else f(vm)
        ins.wlg = "all" if lg0 else f(lg)
        self.cur.append(ins)
    def comment(self, t):
        ins = Ins("; " + t, "dir"); self.cur.append(ins)
    def loop(self, name, n_iter, body, counter, virt=None):
        iters = []
        saved = self.cur
        for it in range(n_iter):
            self.cur = []
            body(it)
            iters.append(self.cur)
        self.cur = saved
        self.cur.append(("loop", name, iters, counter))
    def flat(self):
        out = []
        for x in self.items:
            if isinstance(x, tuple):
                for it in x[2]: out.extend(it)
            else: out.append(x)
        return out
    def resolve(self):
        nvm = 0; nlg = 0
        smem_out = False
        for ins in self.flat():
            if ins.kind == "vmem":
                ins.tok.idx = nvm; nvm += 1
            elif ins.kind == "ds":
                ins.tok.idx = nlg; nlg += 1
            elif ins.kind == "smem":
                smem_out = True
            elif ins.kind == "wait" and ins.wvm is None and ins.wlg is None:
                if "lgkmcnt(0)" in ins.text: smem_out = False
            elif ins.kind == "wait" and (ins.wvm is not None or ins.wlg is not None):
                vmn = lgn = None
                if ins.wvm == "all": vmn = 0
                elif ins.wvm:
                    for t in ins.wvm: assert t.kind == "vmem" and t.idx is not None, "wait on a token not yet issued"
                    vmn = nvm - 1 - max(t.idx for t in ins.wvm)
                if ins.wlg == "all": lgn = 0; smem_out = False
                elif ins.wlg:
                    for t in ins.wlg: assert t.kind == "ds" and t.idx is not None
                    lgn = nlg - 1 - max(t.idx for t in ins.wlg)
                    assert not smem_out, "counted lgkm wait with SMEM outstanding"
                ins.wvm = vmn; ins.wlg = lgn
                ins.site = "resolved"
    def _wtext(self, vmn, lgn):
        parts = []
        if vmn is not None: parts.append(f"vmcnt({min(vmn,63)})")
        if lgn is not None: parts.append(f"lgkmcnt({min(lgn,15)})")
        return "s_waitcnt " + " ".join(parts) if parts else None
    def lines(self):
        self.resolve()
        out = []
        def one(ins):
            if ins.kind == "wait" and ins.site == "resolved":
                t = self._wtext(ins.wvm, ins.wlg)
                if t: out.append(t)
            else: out.append(ins.text)
        for x in self.items:
            if isinstance(x, tuple):
                _, name, iters, counter = x
                n = len(iters)
                L = len(iters[0])
                for it in iters: assert len(it) == L, f"loop {name}: iteration lengths differ"
                if n > 1:
                    out.append(f"s_mov_b32 {counter}, {n}")
                    out.append(f"{name}:")
                for p in range(L):
                    col = [it[p] for it in iters]
                    if col[0].kind == "wait" and col[0].site == "resolved":
                        vs = [c.wvm for c in col if c.wvm is not None]
                        ls = [c.wlg for c in col if c.wlg is not None]
                        t = self._wtext(min(vs) if vs else None, min(ls) if ls else None)
                        if t: out.append(t)
                    else:
                        for c in col: assert c.text == col[0].text, f"loop {name} pos {p}: {c.text!r} vs {col[0].text!r}"
                        out.append(col[0].text)
                if n > 1:
                    out.append(f"s_sub_u32 {counter}, {counter}, 1")
                    out.append(f"s_cmp_lg_u32 {counter}, 0")
                    out.append(f"s_cbranch_scc1 {name}")
            else: one(x)
        return out

_reg = re.compile(r"^(-|abs\(|neg\()?([vas])(\d+)\)?$|^(-|abs\(|neg\()?([vas])\[(\d+):(\d+)\]\)?$")
def regs_of(tok):
    tok = tok.strip()
    tok = re.sub(r"^\|(.*)\|$", r"\1", tok); tok = re.sub(r"^-\|(.*)\|$", r"\1", tok)
    m = _reg.match(tok)
    if m:
        if m.group(2): return {(m.group(2), int(m.group(3)))}
        return {(m.group(5), i) for i in range(int(m.group(6)), int(m.group(7)) + 1)}
    if tok == "vcc": return {("s", "vcc")}
    if tok in ("vcc_lo", "vcc_hi"): return {("s", "vcc")}
    if tok == "exec": return {("s", "exec")}
    if tok == "m0": return {("s", "m0")}
    return set()

TRANS = ("v_exp_f32", "v_log_f32", "v_rcp_f32", "v_rsq_f32", "v_sqrt_f32", "v_sin_f32", "v_cos_f32")
def rw(text):
    k = classify(text)
    body = text.split(";")[0].strip()
    parts = body.split(None, 1)
    op = parts[0]
    ops = [x.strip() for x in parts[1].split(",")] if len(parts) > 1 else []
    if ops:
        ops[-1:] = ops[-1].split()[:1] + [] if k not in ("vmem", "ds") else [ops[-1]]
    W, Rd = set(), set()
    info = {"op": op}
    base = re.sub(r"_(e32|e64|dpp|sdwa)$", "", op)
    if k == "mfma":
        W |= regs_of(ops[0]); info["A"] = regs_of(ops[1]); info["B"] = regs_of(ops[2]); info["C"] = regs_of(ops[3]); info["D"] = set(W)
        Rd |= info["A"] | info["B"] | info["C"]
        info["passes"] = 8 if "32x32" in op else 4
    elif k == "valu":
        if base.startswith("v_cmp"):
            W |= regs_of(ops[0]); [Rd.update(regs_of(x)) for x in ops[1:]]
            if base.startswith("v_cmpx"): W.add(("s", "exec"))
        elif base in ("v_add_co_u32", "v_sub_co_u32", "v_addc_co_u32", "v_subb_co_u32", "v_subrev_co_u32"):
            W |= regs_of(ops[0]) | regs_of(ops[1]); [Rd.update(regs_of(x)) for x in ops[2:]]
        elif base == "v_swap_b32":
            W |= regs_of(ops[0]) | regs_of(ops[1]); Rd |= W
        elif base.startswith("v_permlane") and "swap" in base:
            W |= regs_of(ops[0]) | regs_of(ops[1]); Rd |= W
            info["permlane"] = True
        else:
            W |= regs_of(ops[0]); [Rd.update(regs_of(x)) for x in ops[1:]]
            if base in ("v_fmac_f32", "v_mac_f32", "v_pk_fmac_f16", "v_dot2c_f32_bf16", "v_writelane_b32"): Rd |= regs_of(ops[0])
            if base == "v_cndmask_b32" and len(ops) == 3: Rd.add(("s", "vcc"))
            if base in ("v_div_fmas_f32",): Rd.add(("s", "vcc"))
        if base in TRANS: info["trans"] = True
        if base.startswith("v_dot"):
            info["dot"] = True; info["srcC"] = regs_of(ops[3]) if len(ops) > 3 else set(); info["srcAB"] = regs_of(ops[1]) | regs_of(ops[2])
        if "dpp" in text or "row_" in text or "quad_perm" in text: info["dpp"] = True
        if base in ("v_readfirstlane_b32", "v_readlane_b32"): info["readlane"] = True
    elif k == "vmem":
        toks = body.split(None, 1)[1]
        fields = [x.strip() for x in toks.split(",")]
        last = fields[-1].split()
        fields[-1] = last[0]; mods = last[1:]
        lds = "lds" in mods
        if op.startswith("buffer_load"):
            if lds:
                for x in fields: Rd |= regs_of(x)
                Rd.add(("s", "m0")); info["ldsdma"] = True
            else:
                W |= regs_of(fields[0])
                for x in fields[1:]: Rd |= regs_of(x)
        elif op.startswith("buffer_store") or op.startswith("buffer_atomic"):
            for x in fields: Rd |= regs_of(x)
            info["sdata"] = regs_of(fields[0]); info["wide"] = ("x3" in op or "x4" in op)
        elif op.startswith("global_load_lds"):
            for x in fields: Rd |= regs_of(x)
            Rd.add(("s", "m0")); info["ldsdma"] = True
        elif op.startswith("global_load"):
            W |= regs_of(fields[0])
            for x in fields[1:]: Rd |= regs_of(x)
        elif op.startswith("global_store") or op.startswith("global_atomic"):
            for x in fields: Rd |= regs_of(x)
            info["sdata"] = regs_of(fields[1]); info["wide"] = ("x3" in op or "x4" in op)
        elif op.startswith("buffer_inv") or op.startswith("buffer_wbl2"): pass
        else: raise ValueError(text)
    elif k == "ds":
        toks = body.split(None, 1)[1]
        fields = [x.strip() for x in toks.split(",")]
        fields[-1] = fields[-1].split()[0]
        if op.startswith("ds_read") or op.startswith("ds_bpermute") or op.startswith("ds_permute") or op.startswith("ds_swizzle"):
            W |= regs_of(fields[0])
            for x in fields[1:]: Rd |= regs_of(x)
        else:
            for x in fields: Rd |= regs_of(x)
            info["dsdata"] = True
    elif k in ("salu", "smem"):
        if base.startswith(("s_cmp", "s_bitcmp", "s_nop", "s_setprio", "s_sleep", "s_sendmsg")):
            for x in ops: Rd |= regs_of(x)
        else:
            if ops: W |= regs_of(ops[0])
            for x in ops[1:]: Rd |= regs_of(x)
            if "saveexec" in base: W.add(("s", "exec")); Rd.add(("s", "exec"))
    return k, W, Rd, info

def nstates(text):
    op = text.split()[0]
    if op == "s_nop": return int(text.split()[1], 0) + 1
    return 1

def need(prod, cons):
    pk, pW, pR, pi = prod; ck, cW, cR, ci = cons
    n = 0
    isv = lambda S: {x for x in S if x[0] in ("v", "a")}
    iss = lambda S: {x for x in S if x[0] == "s"}
    if pk == "valu" and pi.get("dot"):
        if pW & (cR | cW):
            if ci.get("dot") and ci["op"] == pi["op"] and not (pW & ci["srcAB"]): pass
            else: n = max(n, 3)
    if pk == "valu":
        if ck == "mfma" and isv(pW) & cR: n = max(n, 2)
        if ck == "mfma" and ("s", "exec") in pW: n = max(n, 4)
        if pi.get("trans") and ck == "valu" and not ci.get("trans") and pW & cR: n = max(n, 1)
        if pi.get("trans") and ck == "valu" and ci.get("trans") and pW & cR: n = max(n, 1)
        if ck == "vmem" and iss(pW) & cR: n = max(n, 5)
        if ck == "valu" and iss(pW) & cR:
            n = max(n, 4 if (ci.get("readlane") or ci["op"].startswith(("v_writelane", "v_div_fmas"))) else 2)
        if ck == "valu" and ci.get("readlane") and isv(pW) & cR: n = max(n, 1)
        if ck == "valu" and ci.get("permlane") and isv(pW) & cR: n = max(n, 2)
        if ck == "valu" and ci.get("dpp") and isv(pW) & cR: n = max(n, 2)
        if ck == "valu" and ci.get("dpp") and ("s", "exec") in pW: n = max(n, 5)
        if ck == "valu" and ("s", "exec") in pW and (ci.get("readlane") or ci.get("permlane")): n = max(n, 4)
        if ck == "branch" and ci.get("op", "") in ("s_cbranch_vccz", "s_cbranch_vccnz", "s_cbranch_execz", "s_cbranch_execnz") and (("s", "vcc") in pW or ("s", "exec") in pW): n = max(n, 5)
        if ck == "salu" and iss(pW) & cR: n = max(n, 1)
    if pk == "mfma":
        P = pi["passes"]
        D = pi["D"]
        if ck == "mfma":
            if D & (ci["A"] | ci["B"]): n = max(n, P + 4)
            if D & ci["C"]:
                if not (ci["C"] == D and ci["passes"] == P): n = max(n, P + 2)
            if D & ci["D"] and not (ci["D"] == D): n = max(n, P + 2)
        elif ck == "valu":
            if D & (cR | cW): n = max(n, P + 4)
            if pi["C"] & cW: n = max(n, P - 1)
        elif ck in ("vmem", "ds"):
            if D & (cR | cW): n = max(n, P + 4)
    if pk == "salu" and ("s", "m0") in pW and ci.get("ldsdma"): n = max(n, 1)
    if pk == "vmem" and pi.get("wide") and pi.get("sdata"):
        if ck == "valu" and pi["sdata"] & cW: n = max(n, 2)
        elif pi["sdata"] & cW: n = max(n, 1)
    return n

_pcache = {}
def _parse(t):
    if t in _pcache: return _pcache[t]
    r = None
    if not (t.startswith(";") or t.startswith(".")):
        k = classify(t)
        if k == "label": r = None
        elif k in ("wait", "barrier", "branch"): r = (k, set(), set(), {"op": t.split()[0]})
        else: r = rw(t)
    _pcache[t] = r
    return r

def fix_hazards(lines, verbose=False):
    WIN = 20
    lines = list(lines)
    P = [_parse(t) for t in lines]
    pre = [0] * len(lines)
    islabel = [t.endswith(":") and not t.startswith(";") for t in lines]
    labels = {t[:-1]: i for i, t in enumerate(lines) if islabel[i]}
    jumps = {}
    for i, t in enumerate(lines):
        if P[i] and P[i][0] == "branch":
            sp = t.split()
            tgt = sp[-1]
            if len(sp) > 1 and tgt in labels: jumps.setdefault(labels[tgt], []).append(i)
    total = 0
    for rnd in range(2):
        for i, t in enumerate(lines):
            c = P[i]
            if c is None or c[0] in ("wait", "barrier"): continue
            worst = 0
            stack = [(i - 1, pre[i], False)]
            seen = set()
            while stack:
                j, dist, viajump = stack.pop()
                while j >= 0 and dist < WIN:
                    if islabel[j]:
                        for src in jumps.get(j, []):
                            if (src, dist) not in seen:
                                seen.add((src, dist)); stack.append((src, dist, True))
                        j -= 1; viajump = False; continue
                    p = P[j]
                    if p is None: j -= 1; continue
                    if p[0] == "branch" and p[3]["op"] in ("s_branch", "s_endpgm", "s_setpc_b64") and not viajump: break
                    viajump = False
                    if p[0] not in ("wait", "barrier", "branch"):
                        n = need(p, c)
                        if n > dist:
                            worst = max(worst, n - dist)
                            if verbose: print(f"hazard: [{lines[j]}] -> [{t}] need {n} have {dist}")
                    dist += nstates(lines[j]) + pre[j]
                    j -= 1
            if worst > 0:
                pre[i] += worst; total += 1
    out = []
    for i, t in enumerate(lines):
        k = pre[i]
        while k > 0:
            x = min(k, 16); out.append(f"s_nop {x-1}"); k -= x
        out.append(t)
    return out, total

def kernel_text(name, lines, vgprs, agprs, sgprs, accum=None):
    acc_off = accum if accum is not None else max(4, (vgprs + 3) // 4 * 4)
    nfv = acc_off + agprs if agprs else vgprs
    body = [f".globl {name}", ".p2align 8", f".type {name},@function", f"{name}:"] + ["  " + l if not l.endswith(":") else l for l in lines]
    kd = [f'.amdhsa_kernel {name}', f'  .amdhsa_next_free_vgpr {nfv}', f'  .amdhsa_next_free_sgpr {sgprs}', f'  .amdhsa_accum_offset {acc_off}',
          '  .amdhsa_group_segment_fixed_size 0', '  .amdhsa_kernarg_size 112', '  .amdhsa_user_sgpr_count 2',
          '  .amdhsa_user_sgpr_kernarg_segment_ptr 1', '  .amdhsa_system_sgpr_workgroup_id_x 1',
          '  .amdhsa_float_denorm_mode_32 3', '  .amdhsa_float_denorm_mode_16_64 3', '  .amdhsa_ieee_mode 0', '  .amdhsa_dx10_clamp 0', '.end_amdhsa_kernel']
    return body, kd

def interleave(P, mf, fill):
    def do(x):
        if callable(x): x()
        else: P.e(x)
    for x in fill.get(-1, []): do(x)
    for i, m in enumerate(mf):
        do(m)
        for x in fill.get(i, []): do(x)
R = R_


def spread(P, mf, streams, pre=(), mid=None):
    def do(x):
        if callable(x): x()
        else: P.e(x)
    for x in pre: do(x)
    nm = len(mf)
    allf = []
    for si, st in enumerate(streams):
        last = -1e9
        for k, (pos, x) in enumerate(st):
            pos = max(pos, last); last = pos
            allf.append((pos, si, k, x))
    allf.sort(key=lambda t: (t[0], t[1], t[2]))
    F = len(allf)
    gaps = [[] for _ in range(nm)]
    if F >= nm:
        for k, t in enumerate(allf): gaps[(k * nm) // F].append(t[3])
    else:
        nxt = 0
        for k, t in enumerate(allf):
            g = max(nxt, min(nm - 1, int(t[0])))
            g = min(g, nm - (F - k))
            g = max(g, nxt)
            gaps[g].append(t[3]); nxt = g + 1
    for i, m in enumerate(mf):
        if mid and i in mid:
            for x in mid[i]: do(x)
        do(m)
        for x in gaps[i]: do(x)

def check_m0(lines):
    fresh = 0
    for t in lines:
        if t.endswith(":"): continue
        if t.split()[0].startswith("s_") and " m0," in t + ",":
            if t.split()[1].startswith("m0"):
                assert fresh == 0, "m0 written twice without a DMA: " + t
                fresh = 1
        if t.endswith(" lds") or " lds " in t:
            assert fresh == 1, "DMA without fresh m0: " + t
            fresh = 0
```

```python
from kcommon import *

class GemmCore:
    def __init__(self, P, name, MT, NT, NST, NS, R, acc, ring, wf, ndma, dma_fn, act_fn, tr_fn, scnt, U=4,
                 ramp_cap=None, LA=None, ld_span=1.0, dahead=None, wgroup=1, SPS=2, dma_pre=None, act_pre=None, act_needs_pre=None):
        self.__dict__.update(locals()); del self.self
        self.AH = R - 1
        self.RF = len(wf)
        if LA is None: self.LA = self.RF - 1
        assert self.LA < self.RF and (SPS * NT * U) % self.RF == 0 and (SPS * U) % R == 0 and U % NS == 0, (SPS, NT, U, self.RF, R, NS)
        self.dma_tok = {}; self.act_tok = {}; self.wf_tok = {}
        self.na = 0; self.nd = 0
        self.nG = SPS * NST
        self.bar_done = set()
        if dahead is None: self.dahead = NS - 2
    def act_changes(self):
        g = self.na // self.MT
        return self.act_needs_pre(g, self.na % self.MT)
    def adv(self, kind):
        if kind == "a": self.na += 1
        else: self.nd += 1
    def rewind(self, loads):
        self.na -= loads.count("a"); self.nd -= loads.count("d")
    def pre_act(self):
        g, m = divmod(self.na, self.MT); self.act_pre(g, m)
    def pre_dma(self):
        s_, i = divmod(self.nd, self.ndma); self.dma_pre(s_, i)
    def issue_act(self):
        g, m = divmod(self.na, self.MT); self.na += 1
        self.act_tok.setdefault(g, []).append(self.act_fn(g, m))
    def issue_dma(self):
        s_, i = divmod(self.nd, self.ndma); self.nd += 1
        self.dma_tok.setdefault(s_, []).append(self.dma_fn(s_, i))
    def trread(self, f, rd):
        G, T = divmod(f, self.NT)
        self.wf_tok.setdefault(f, []).append(self.tr_fn(G, T, rd, self.wf[f % self.RF].sub(2 * rd, 2)))
    def barrier_for(self, stage):
        self.P.wait(vm=self.dma_tok[stage]); self.P.e("s_barrier")
    def plan(self, G, cap):
        SPS = self.SPS
        s_, q = divmod(G, SPS)
        na, nd = self.na, self.nd
        a_lim = (G + self.AH + 1) * self.MT
        d_lim = (s_ + self.dahead) * self.ndma + -(-self.ndma * (q + 1) // SPS)
        a_lim = min(a_lim, self.nG * self.MT); d_lim = min(d_lim, self.NST * self.ndma)
        out = []
        while len(out) < cap and (na < a_lim or nd < d_lim):
            da = na // self.MT if na < a_lim else 1 << 30
            dd = SPS * (nd // self.ndma) - 1 if nd < d_lim else 1 << 30
            if dd <= da: out.append("d"); nd += 1
            else: out.append("a"); na += 1
        return out
    def prologue_loads(self, n_act_steps=1, n_dma_stages=1):
        for _ in range(self.ndma * n_dma_stages): self.pre_dma(); self.P.e("s_nop 0"); self.issue_dma()
        for _ in range(self.MT * n_act_steps):
            if self.act_changes(): self.pre_act()
            self.issue_act()
    def pre_w(self, nst):
        for _ in range(self.ndma * nst): self.pre_dma(); self.P.e("s_nop 0"); self.issue_dma()
    def pre_a(self, nsteps):
        for _ in range(self.MT * nsteps):
            if self.act_changes(): self.pre_act()
            self.issue_act()
    def start(self):
        self.barrier_for(0)
        for f in range(self.LA):
            self.trread(f, 0); self.trread(f, 1)
    def step(self, G, cap=None, extra=None, noloads=False):
        P = self.P; SPS = self.SPS
        NT, MT = self.NT, self.MT
        mf = []; mid = {}
        nf_total = self.nG * NT
        rd_st = []
        for T in range(NT):
            f = G * NT + T
            ms = range(MT) if T % 2 == 0 else range(MT - 1, -1, -1)
            base = len(mf)
            pre = []
            if T == 0: pre.append(lambda: P.wait(vm=self.act_tok[G]))
            if T % self.wgroup == 0:
                fl = min(f + self.wgroup - 1, G * NT + NT - 1)
                pre.append(lambda fl=fl: P.wait(lg=self.wf_tok[fl]))
            fn = f + self.LA
            if fn < nf_total:
                if fn % (SPS * NT) == 0:
                    pre.append(lambda st=fn // (SPS * NT): self.barrier_for(st))
                rd_st.append((base, lambda fn=fn: self.trread(fn, 0)))
                rd_st.append((base + MT / 2, lambda fn=fn: self.trread(fn, 1)))
            mid[base] = pre
            for m in ms:
                mf.append(f"v_mfma_f32_16x16x32_bf16 {self.acc[m][T]}, {self.wf[f % self.RF]}, {self.ring[G % self.R][m]}, {self.acc[m][T]}")
        nm = len(mf)
        ld_st = []
        loads = self.plan(G, cap if cap is not None else 1 << 30) if not noloads else []
        n = len(loads)
        for i, kind in enumerate(loads):
            pos = max(0, min(nm - 2, ((2 * i + 1) * nm * self.ld_span) / (2 * n) - 1))
            if kind == "a":
                if self.act_changes(): ld_st.append((pos, self.pre_act))
                ld_st.append((pos, self.issue_act))
            else:
                ld_st.append((pos, self.pre_dma)); ld_st.append((pos + 1, self.issue_dma))
            self.adv(kind)
        self.rewind(loads)
        extra = extra or getattr(self, 'extras', {}).get(G, [])
        self._emit(mf, mid, rd_st, ld_st, extra)
    def _emit(self, mf, mid, rd_st, ld_st, extra):
        P = self.P
        nm = len(mf)
        gaps = [[] for _ in range(nm)]
        for pos, x in rd_st: gaps[min(nm - 1, int(pos))].append(x)
        for st in (ld_st, extra):
            lo = 0
            for pos, x in st:
                g = max(lo, min(nm - 1, int(pos)))
                cand = list(range(g, min(nm, g + 3)))
                h = min(cand, key=lambda t: (len(gaps[t]), t))
                gaps[h].append(x); lo = h
        do = lambda x: x() if callable(x) else P.e(x)
        for i, m in enumerate(mf):
            for x in mid.get(i, []): do(x)
            do(m)
            for x in gaps[i]: do(x)
    def run(self, P1=None):
        P = self.P; U = self.U; SPS = self.SPS
        P1 = U if P1 is None else P1
        for G in range(0, SPS * P1): self.step(G, cap=self.ramp_cap)
        while self.plan(SPS * P1 - 1, 1 << 30):
            for G in range(SPS * P1, SPS * (P1 + 1)): self.step(G, cap=self.ramp_cap)
            P1 += 1
        if getattr(self, "after_peel", None): self.after_peel()
        nloop = (self.NST - P1 - max(1, self.dahead, -(-self.AH // SPS))) // U
        def body(it):
            for G in range(SPS * (P1 + U * it), SPS * (P1 + U * (it + 1))): self.step(G)
        if nloop > 0:
            P.loop(f"L_loop_{self.name}", nloop, body, self.scnt)
        if getattr(self, "after_loop", None): self.after_loop()
        for G in range(SPS * (P1 + U * nloop), self.nG): self.step(G)
```

```python
from gemm_core import *
CS = 128 ** -0.5 * LOG2E
WS_PO = 20 * MB
WS_PD = 84 * MB
WS_SYNC = 74 * MB
QBIAS = 64.0
LDS_LN = 134144
LDS_TOTAL = 134144 + 1024
SPIN_MAX = 1 << 20
PH_LN1, PH_QA, PH_O, PH_LN2, PH_KU, PH_D = range(6)

def unpack(P, lo, hi, src):
    P.e(f"v_lshlrev_b32 {lo}, 16, {src}\nv_and_b32 {hi}, 0xffff0000, {src}")

def gen_mega(ts=False, name="main_kernel", **opts):
    o = dict(scl=" sc1", scs=" sc1", touch=True, dahead=3, wgroup=2, LA=None)
    o.update(opts)
    SCL = o["scl"]; SCS = o["scs"]
    P = Prog()
    sa = Alloc("s", 4, 94)
    ptr = {}
    for k in ("x", "kc", "vc", "wq", "wo", "wg", "wu", "wd", "out", "ws"): ptr[k] = sa.get(2, 2)
    swave = sa.get(); steam = sa.get(); sx = sa.get(); sjj = sa.get(); smem = sa.get()
    scnt = sa.get(); st0 = sa.get(); st1 = sa.get(); st2 = sa.get(); sidx = sa.get()
    psync = sa.get(2, 2); sret = sa.get(2, 2)
    srdW = sa.get(4, 4); srdA = sa.get(4, 4); srd2 = sa.get(4, 4); srd3 = sa.get(4, 4); srd4 = sa.get(4, 4); srd5 = sa.get(4, 4)
    sWoff = sa.get(); sLds = sa.get(); sAoff = sa.get()
    sp = [sa.get() for _ in range(11)]
    tsp = R_("s", 96, 2); tsq = R_("s", 98, 2); pts = sa.get(2, 2) if ts else None
    nst = [0]; names = []
    def stamp(nm=""):
        if not ts: return
        L = f"L_st{nst[0]}"
        P.e(f"s_cmp_lg_u32 {swave}, 0\ns_cbranch_scc1 {L}")
        P.e(f"s_memrealtime {tsp}\ns_memtime {tsq}\ns_waitcnt lgkmcnt(0)\nv_mov_b32 v2, {tsp[0]}\nv_mov_b32 v3, {tsq[0]}\ns_mov_b64 exec, 1")
        P.e(f"v_mov_b32 v254, 0") if False else None
        P.e(f"global_store_dwordx2 v1, v[2:3], {pts} offset:{nst[0]*8}", nocount=True)
        P.e(f"s_mov_b64 exec, -1\n{L}:"); nst[0] += 1; names.append(nm)
    vlane = R_("v", 1); vsy = R_("v", 2, 2)
    GA = R_("v", 4, 10); vact = R_("v", 14, 2); vtmp = R_("v", 16, 4)
    x2a = R_("a", 224, 32)
    uid = [0]
    def lab(s_):
        uid[0] += 1; return f"L_{s_}{uid[0]}"

    def cidx(phase, sub=None):
        P.e(f"s_lshl_b32 {sidx}, {steam}, 3\ns_add_u32 {sidx}, {sidx}, {phase * 64}")
        if sub is not None: P.e(f"s_add_u32 {sidx}, {sidx}, {sub}")
        P.e(f"s_lshl_b32 {sidx}, {sidx}, 7")
    def signal(phase, sub=None):
        P.e("s_waitcnt vmcnt(0)\ns_barrier")
        L = lab("sig")
        P.e(f"s_cmp_lg_u32 {swave}, 0\ns_cbranch_scc1 {L}")
        cidx(phase, sub)
        P.e(f"v_mov_b32 {vsy[0]}, {sidx}\nv_mov_b32 {vsy[1]}, 1\ns_mov_b64 exec, 1")
        P.e(f"global_atomic_add {vsy[0]}, {vsy[1]}, {psync}", nocount=True)
        P.e(f"s_mov_b64 exec, -1\n{L}:")
    def wait(phase, target, sub=None):
        L = lab("wt"); Lp = lab("poll"); Ld = lab("pd")
        P.e(f"s_cmp_lg_u32 {swave}, 0\ns_cbranch_scc1 {L}")
        cidx(phase, sub)
        P.e(f"v_mov_b32 {vsy[0]}, {sidx}\ns_mov_b32 {st2}, {SPIN_MAX}")
        P.e(f"{Lp}:")
        P.e(f"global_load_dword {vsy[1]}, {vsy[0]}, {psync} sc1", nocount=True)
        P.e(f"s_waitcnt vmcnt(0)\nv_readfirstlane_b32 {st1}, {vsy[1]}\ns_cmp_ge_u32 {st1}, {target}\ns_cbranch_scc1 {Ld}")
        P.e(f"s_sub_u32 {st2}, {st2}, 1\ns_cmp_eq_u32 {st2}, 0\ns_cbranch_scc1 {Ld}\ns_sleep 1\ns_branch {Lp}\n{Ld}:")
        P.e(f"{L}:\ns_barrier")
    def touch(key, nbytes, ninstr, srdT, vt):
        make_srd(P, srdT, ptr[key], nbytes)
        P.e(f"s_lshl_b32 {st0}, s2, 2\ns_add_u32 {st0}, {st0}, {swave}\ns_mul_i32 {st0}, {st0}, {ninstr * 8192}\nv_lshlrev_b32 {vt[0]}, 7, {vlane}")
        for i in range(ninstr):
            P.e(f"buffer_load_dword {vt[1]}, {vt[0]}, {srdT}, {st0} offen")
            if i + 1 < ninstr: P.e(f"s_add_u32 {st0}, {st0}, 8192")

    P.e(f"s_cmp_ge_u32 s2, 256\ns_cbranch_scc1 L_end_{name}")
    P.e("s_load_dwordx8 s[4:11], s[0:1], 0")
    for k_ in ("wo", "wg", "wu", "wd", "out", "ws"): load_ptr(P, ptr[k_], k_)
    assert ptr["wg"].base == 14 and ptr["wu"].base == 16 and ptr["wo"].base == 12
    P.e(f"v_lshrrev_b32 {vsy[0]}, 6, v0\nv_and_b32 {vlane}, 63, v0\ns_nop 0\nv_readfirstlane_b32 {swave}, {vsy[0]}")
    P.e(f"s_and_b32 {sx}, s2, 7\ns_lshr_b32 {st0}, s2, 3\ns_and_b32 {steam}, {st0}, 7\ns_lshr_b32 {sjj}, s2, 6\ns_lshl_b32 {smem}, {sx}, 2\ns_add_u32 {smem}, {smem}, {sjj}")
    P.e(f"s_lshl_b32 {st0}, {steam}, 4\ns_lshl_b32 {st1}, {swave}, 2\ns_add_u32 {st0}, {st0}, {st1}\ns_lshl_b32 {st0}, {st0}, 11")
    if o.get("hack_samerows"): P.e(f"s_lshl_b32 {st0}, {swave}, 13")
    P.e(f"v_lshlrev_b32 {vact[0]}, 4, {vlane}\nv_add_u32 {vact[0]}, {st0}, {vact[0]}\nv_add_u32 {vact[1]}, 4096, {vact[0]}")
    P.e("s_waitcnt lgkmcnt(0)")
    P.e(f"s_add_u32 {psync[0]}, {ptr['ws'][0]}, {WS_SYNC}\ns_addc_u32 {psync[1]}, {ptr['ws'][1]}, 0")
    if ts:
        P.e(f"s_lshl_b32 {st0}, s2, 8\ns_add_u32 {st0}, {st0}, {WS_TS}\ns_add_u32 {pts[0]}, {ptr['ws'][0]}, {st0}\ns_addc_u32 {pts[1]}, {ptr['ws'][1]}, 0")
    stamp("start")

    def rows_phase(kind, pre_sync=None):
        va = Alloc("v", 20, 256)
        vt = va.get(8, 4); vfa = va.get(); vxa = va.get(); vma = va.get()
        X = [va.get(8, 4) for i in range(4)]; raw = [va.get(4, 4) for i in range(4)]
        par = [[va.get(4, 4) for p in range(4)] for i in range(4)] if kind != "ln1" else None
        m1 = [va.get(8, 4) for i in range(4)]
        m2 = [va.get(8, 4) for i in range(4)] if kind != "fin" else None
        m3 = [va.get(8, 4) for i in range(4)] if kind == "ln2" else None
        srdX, srdM, srdP, srdF = srd2, srd3, srd4, srd5
        so = sp[0:4]; srow = sp[4]
        P.e(f"s_lshl_b32 {srow}, {steam}, 5\ns_add_u32 {srow}, {srow}, {smem}")
        P.e(f"v_lshrrev_b32 {vt[0]}, 6, v0\nv_lshlrev_b32 {vt[0]}, 18, {vt[0]}\nv_bfe_u32 {vt[1]}, v0, 5, 1\nv_lshlrev_b32 {vt[1]}, 10, {vt[1]}")
        P.e(f"v_bfe_u32 {vt[2]}, v0, 3, 2\nv_lshlrev_b32 {vt[2]}, 8, {vt[2]}\nv_and_b32 {vt[3]}, 7, v0\nv_lshlrev_b32 {vt[4]}, 4, {vt[3]}")
        P.e(f"v_add3_u32 {vfa}, {vt[0]}, {vt[1]}, {vt[2]}\nv_add_u32 {vfa}, {vfa}, {vt[4]}")
        P.e(f"s_lshr_b32 {st0}, {srow}, 1\ns_lshl_b32 {st0}, {st0}, 11\ns_and_b32 {st1}, {srow}, 1\ns_lshl_b32 {st1}, {st1}, 7\ns_add_u32 {st0}, {st0}, {st1}\nv_add_u32 {vfa}, {st0}, {vfa}")
        P.e(f"v_lshrrev_b32 {vt[0]}, 5, v0\nv_lshlrev_b32 {vt[0]}, 5, {vt[0]}\nv_lshrrev_b32 {vt[2]}, 6, {vt[2]}\nv_add_u32 {vt[0]}, {vt[0]}, {vt[2]}\nv_lshlrev_b32 {vma}, 2, {vt[0]}")
        P.e(f"s_lshl_b32 {st0}, {srow}, 14\nv_lshlrev_b32 {vt[3]}, 11, {vt[3]}\nv_lshlrev_b32 {vt[0]}, 1, {vt[0]}\nv_add3_u32 {vxa}, {vt[3]}, {vt[0]}, {st0}")
        make_srd(P, srdX, ptr["x"] if kind != "fin" else ptr["out"], 2048 * 1024 * 2)
        make_srd(P, srdM, ptr["ws"], 6144 * 4, WS_MODF)
        if kind != "ln1": make_srd(P, srdP, ptr["ws"], 16 * MB, WS_PO if kind == "ln2" else WS_PD)
        if kind != "fin": make_srd(P, srdF, ptr["ws"], 4 * MB, WS_H if kind == "ln1" else WS_H2)
        for i in range(4): P.e(f"s_mov_b32 {so[i]}, {i * 4 * 262144}")
        tk = []; tm = []
        if kind != "fin":
            for i in range(4):
                tk.append(P.e(f"buffer_load_dwordx2 {raw[i].sub(0,2)}, {vxa}, {srdX}, 0 offen offset:{i*512}"))
                tk.append(P.e(f"buffer_load_dwordx2 {raw[i].sub(2,2)}, {vxa}, {srdX}, 0 offen offset:{i*512 + 32}"))
        mods = {"ln1": [(m1, 1), (m2, 0)], "ln2": [(m1, 4), (m2, 3), (m3, 2)], "fin": [(m1, 5)]}[kind]
        for regs, mi in mods:
            P.e(f"s_mov_b32 {st1}, {mi*4096}")
            for i in range(4):
                tm.append(P.e(f"buffer_load_dwordx4 {regs[i].sub(0,4)}, {vma}, {srdM}, {st1} offen offset:{i*1024}"))
                tm.append(P.e(f"buffer_load_dwordx4 {regs[i].sub(4,4)}, {vma}, {srdM}, {st1} offen offset:{i*1024 + 64}"))
        if pre_sync: pre_sync()
        if kind != "ln1":
            for i in range(4):
                for p in range(4):
                    P.e(f"s_add_u32 {st0}, {so[i]}, {p*4*MB}")
                    tk.append(P.e(f"buffer_load_dwordx4 {par[i][p]}, {vfa}, {srdP}, {st0} offen{SCL}"))
        LO, HI = sp[5], sp[6]
        P.e(f"s_mov_b32 {LO}, 0x00003f80\ns_mov_b32 {HI}, 0x3f800000")
        pr = lambda R8, j: R8.sub(2 * j, 2)
        if kind == "fin":
            for i in range(4):
                for j in range(8): P.e(f"v_accvgpr_read_b32 {X[i][j]}, {x2a[8*i+j]}")
        P.wait(vm=tm + (tk[:8] if kind != "fin" else []))
        if kind != "fin":
            for i in range(4):
                for j in range(4): unpack(P, X[i][2*j], X[i][2*j+1], raw[i][j])
            for i in range(4):
                for j in range(4): P.e(f"v_pk_add_f32 {pr(m1[i], j)}, {pr(m1[i], j)}, 1.0 op_sel_hi:[1,0]")
            if kind == "ln1":
                for i in range(4):
                    for j in range(8): P.e(f"v_mul_f32 {m2[i][j]}, {f2u(CS):#x}, {m2[i][j]}")
            else:
                for i in range(4):
                    for j in range(8): P.e(f"v_mul_f32 {m2[i][j]}, {f2u(LOG2E):#x}, {m2[i][j]}")
        else:
            for i in range(4):
                for j in range(8): P.e(f"v_mul_f32 {m1[i][j]}, {f2u(1.0 / (LOG2E * LOG2E)):#x}, {m1[i][j]}")
        if kind != "ln1":
            gate = m3 if kind == "ln2" else m1
            for i in range(4):
                P.wait(vm=tk[len(tk) - 16 + 4 * i: len(tk) - 16 + 4 * i + 4])
                pend = None
                for j in range(4):
                    a = vt.sub(2 * (j & 1), 2)
                    P.e(f"v_dot2_f32_bf16 {a[0]}, {par[i][0][j]}, {LO}, 0\nv_dot2_f32_bf16 {a[1]}, {par[i][0][j]}, {HI}, 0")
                    for p in range(1, 4):
                        P.e(f"v_dot2_f32_bf16 {a[0]}, {par[i][p][j]}, {LO}, {a[0]}\nv_dot2_f32_bf16 {a[1]}, {par[i][p][j]}, {HI}, {a[1]}")
                        if p == 2 and pend: P.e(pend); pend = None
                    pend = f"v_pk_fma_f32 {pr(X[i], j)}, {a}, {pr(gate[i], j)}, {pr(X[i], j)}"
                P.e(pend)
        if kind == "fin":
            for i in range(4):
                for j in range(4): P.e(f"v_cvt_pk_bf16_f32 {raw[i][j]}, {X[i][2*j]}, {X[i][2*j+1]}")
                P.e(f"buffer_store_dwordx2 {raw[i].sub(0,2)}, {vxa}, {srdX}, 0 offen offset:{i*512}")
                P.e(f"buffer_store_dwordx2 {raw[i].sub(2,2)}, {vxa}, {srdX}, 0 offen offset:{i*512 + 32}")
            return
        if kind == "ln2":
            for i in range(4):
                for j in range(8): P.e(f"v_accvgpr_write_b32 {x2a[8*i+j]}, {X[i][j]}")
        vs2 = vt.sub(4, 2); vs, vtm = vt[4], vt[5]; vl, vrd = vt[6], vt[7]
        P.e(f"v_lshrrev_b32 {vl}, 6, v0\nv_lshlrev_b32 {vl}, 5, {vl}\nv_and_b32 {vrd}, 7, v0\nv_lshlrev_b32 {vrd}, 2, {vrd}\nv_add_u32 {vrd}, {LDS_LN}, {vrd}\nv_add_u32 {vl}, {vl}, {vrd}")
        def block_sum(off):
            P.e(f"v_add_f32 {vs}, {vs}, {vtm}")
            P.e(f"s_nop 1\nv_add_f32_dpp {vs}, {vs}, {vs} row_ror:8 row_mask:0xf bank_mask:0xf")
            P.e(f"v_mov_b32 {vtm}, {vs}\ns_nop 1\nv_permlane16_swap_b32 {vs}, {vtm}\ns_nop 1\nv_add_f32 {vs}, {vs}, {vtm}")
            P.e(f"v_mov_b32 {vtm}, {vs}\ns_nop 1\nv_permlane32_swap_b32 {vs}, {vtm}\ns_nop 1\nv_add_f32 {vs}, {vs}, {vtm}")
            P.e(f"ds_write_b32 {vl}, {vs} offset:{off}\ns_waitcnt lgkmcnt(0)\ns_barrier")
            P.e(f"ds_read_b32 {vt[0]}, {vrd} offset:{off}\nds_read_b32 {vt[1]}, {vrd} offset:{off+32}\nds_read_b32 {vt[2]}, {vrd} offset:{off+64}\nds_read_b32 {vt[3]}, {vrd} offset:{off+96}\ns_waitcnt lgkmcnt(0)")
            P.e(f"v_add_f32 {vt[0]}, {vt[0]}, {vt[1]}\nv_add_f32 {vt[2]}, {vt[2]}, {vt[3]}\nv_add_f32 {vs}, {vt[0]}, {vt[2]}")
        prs = [pr(X[i], j) for i in range(4) for j in range(4)]
        P.e(f"v_pk_add_f32 {vs2}, {prs[0]}, {prs[1]}")
        for q_ in prs[2:]: P.e(f"v_pk_add_f32 {vs2}, {vs2}, {q_}")
        block_sum(0)
        P.e(f"v_mul_f32 {vs}, {f2u(-1.0/1024):#x}, {vs}")
        for q_ in prs: P.e(f"v_pk_add_f32 {q_}, {q_}, {vs2} op_sel_hi:[1,0]")
        P.e(f"v_pk_mul_f32 {vs2}, {prs[0]}, {prs[0]}")
        for q_ in prs[1:]: P.e(f"v_pk_fma_f32 {vs2}, {q_}, {q_}, {vs2}")
        block_sum(128)
        P.e(f"v_mov_b32 {vtm}, {f2u(1e-5):#x}\nv_fmac_f32 {vtm}, {f2u(1.0/1024):#x}, {vs}\nv_rsq_f32 {vs}, {vtm}")
        P.e(f"s_nop 0\nv_mul_f32 {vs}, {f2u(CS if kind == 'ln1' else LOG2E):#x}, {vs}")
        for i in range(4):
            for j in range(4):
                P.e(f"v_pk_mul_f32 {pr(X[i], j)}, {pr(X[i], j)}, {vs2} op_sel_hi:[1,0]")
                P.e(f"v_pk_fma_f32 {pr(X[i], j)}, {pr(X[i], j)}, {pr(m1[i], j)}, {pr(m2[i], j)}")
            for j in range(4): P.e(f"v_cvt_pk_bf16_f32 {raw[i][j]}, {X[i][2*j]}, {X[i][2*j+1]}")
            P.e(f"buffer_store_dwordx4 {raw[i]}, {vfa}, {srdF}, {so[i]} offen{SCS}")

    def gemm128(tag, wkey, wrow, wbytes, set_col_k0, act_off, act_bytes, set_a0, NST, acc, ring, wf, lds_base, U=4):
        vdW, vtr = GA[0], GA[7]
        STG = 16 * 1056; NS = 4; Rr = len(ring)
        def setup_w():
            set_col_k0(st1, st2)
            P.e(f"v_lshrrev_b32 {vtmp[0]}, 4, {vlane}\nv_mul_u32_u24 {vtmp[1]}, {16*wrow}, {vtmp[0]}\nv_and_b32 {vtmp[2]}, 15, {vlane}\nv_lshlrev_b32 {vtmp[2]}, 4, {vtmp[2]}")
            P.e(f"v_add3_u32 {vdW}, {vtmp[1]}, {vtmp[2]}, {st1}")
            P.e(f"s_lshl_b32 {st0}, {swave}, 2\ns_add_u32 {st0}, {st0}, {st2}\ns_mul_i32 {sWoff}, {st0}, {wrow}\ns_mul_i32 {sLds}, {swave}, {4*1056}\ns_add_u32 {sLds}, {sLds}, {lds_base}")
            P.e(f"v_lshrrev_b32 {vtmp[0]}, 2, {vlane}\nv_mul_u32_u24 {vtr}, 1056, {vtmp[0]}\nv_and_b32 {vtmp[0]}, 3, {vlane}\nv_lshlrev_b32 {vtmp[0]}, 3, {vtmp[0]}\nv_add_u32 {vtr}, {vtr}, {vtmp[0]}")
            if lds_base: P.e(f"v_add_u32 {vtr}, {lds_base}, {vtr}")
            make_srd(P, srdW, ptr[wkey], wbytes)
        def setup_a():
            make_srd(P, srdA, ptr["ws"], act_bytes, act_off)
            set_a0(sAoff)
        def dma_pre(stage, i):
            if stage > 0 or i > 0: P.e(f"s_add_u32 {sWoff}, {sWoff}, {wrow if i > 0 else (64 - 4 + 1)*wrow}")
            P.e(f"s_add_u32 m0, {sLds}, {(stage % NS)*STG + i*1056}")
        def dma_fn(stage, i): return P.e(f"buffer_load_dwordx4 {vdW}, {srdW}, {sWoff} offen lds")
        act_needs_pre = lambda g, m: m == 0 and g > 0 and (g & 1) == 0
        def act_pre(g, m): P.e(f"s_add_u32 {sAoff}, {sAoff}, 262144")
        def act_fn(g, m):
            return P.e(f"buffer_load_dwordx4 {ring[g % Rr][m]}, {vact[m >> 1]}, {srdA}, {sAoff} offen offset:{(m & 1)*2048 + (g & 1)*1024}{SCL}")
        def tr_fn(G, T, rd, dst):
            stage, q = divmod(G, 2); slot = stage % NS
            return P.e(f"ds_read_b64_tr_b16 {dst}, {vtr} offset:{slot * STG + (2 * q + rd) * 256 + 32 * T}")
        C = GemmCore(P, tag, 4, 8, NST, NS, Rr, acc, ring, wf, 4, dma_fn, act_fn, tr_fn, scnt, U=U, dahead=o["dahead"], wgroup=o["wgroup"], LA=o["LA"],
                     dma_pre=dma_pre, act_pre=act_pre, act_needs_pre=act_needs_pre)
        C.setup_w, C.setup_a = setup_w, setup_a
        return C
    def zero_acc(acc):
        for row in acc:
            for A in row:
                for r in range(4): P.e(f"v_mov_b32 {A[r]}, 0")
    def pre_gemm(C, acc):
        C.setup_a(); zero_acc(acc)
    def run_gemm(C, acc, P1):
        C.pre_a(C.R - 1)
        C.start()
        if o.get("fine"):
            C.after_peel = lambda: stamp(C.name + "_st"); C.after_loop = lambda: stamp(C.name + "_lp")
        C.run(P1=P1)

    qacc = [[R_("v", 64 + (m * 8 + T) * 4, 4) for T in range(8)] for m in range(4)]
    ringQ = [[R_("a", 128 + (r * 4 + m) * 4, 4) for m in range(4)] for r in range(4)]
    wfQ = [R_("a", 192 + 4 * i, 4) for i in range(8)]
    KSL = 16 * 1040; VSL = 16 * 1056; W_BASE = 4 * KSL
    CQ = gemm128("q", "wq", 8192, 1024 * 8192,
                 lambda c_, k_: P.e(f"s_lshl_b32 {c_}, {smem}, 8\ns_mov_b32 {k_}, 0"),
                 WS_H, 4 * MB, lambda a_: P.e(f"s_mov_b32 {a_}, 0"), 16, qacc, ringQ, wfQ, W_BASE)
    pacc = [[R_("v", 64 + (m * 8 + T) * 4, 4) for T in range(8)] for m in range(4)]
    ringP = [[R_("a", (r * 4 + m) * 4, 4) for m in range(4)] for r in range(4)]
    wfP = [R_("a", 64 + 4 * i, 4) for i in range(8)]
    def proj(tag, wkey, K, act_off):
        KL = K // 4; NST = KL // 64
        def colk(c_, k_):
            P.e(f"s_and_b32 {c_}, {sx}, 1\ns_lshl_b32 {c_}, {c_}, 2\ns_add_u32 {c_}, {c_}, {sjj}\ns_lshl_b32 {c_}, {c_}, 8\ns_lshr_b32 {k_}, {sx}, 1\ns_mul_i32 {k_}, {k_}, {KL}")
        def a0(a_): P.e(f"s_lshr_b32 {a_}, {sx}, 1\ns_mul_i32 {a_}, {a_}, {NST*262144}")
        return gemm128(tag, wkey, 2048, K * 2048, colk, act_off, 2048 * K * 2, a0, NST, pacc, ringP, wfP, 0)
    CO = proj("o", "wo", 4096, WS_O)
    CD = proj("d", "wd", 3584, WS_ACT)
    def proj_epilogue(ws_off):
        make_srd(P, srd2, ptr["ws"], 16 * MB, ws_off)
        P.e(f"s_lshr_b32 {st0}, {sx}, 1\ns_lshl_b32 {st0}, {st0}, 22\ns_and_b32 {st1}, {sx}, 1\ns_lshl_b32 {st1}, {st1}, 2\ns_add_u32 {st1}, {st1}, {sjj}\ns_lshl_b32 {st1}, {st1}, 19\ns_add_u32 {st0}, {st0}, {st1}")
        for m in range(4):
            for kb in range(4):
                A0, A1 = pacc[m][2 * kb], pacc[m][2 * kb + 1]
                P.e(f"v_cvt_pk_bf16_f32 {A0[0]}, {A0[0]}, {A0[1]}\nv_cvt_pk_bf16_f32 {A0[1]}, {A0[2]}, {A0[3]}\nv_cvt_pk_bf16_f32 {A0[2]}, {A1[0]}, {A1[1]}\nv_cvt_pk_bf16_f32 {A0[3]}, {A1[2]}, {A1[3]}")
                P.e(f"s_add_u32 {st1}, {st0}, {(kb >> 1)*262144}")
                P.e(f"buffer_store_dwordx4 {A0}, {vact[m >> 1]}, {srd2}, {st1} offen offset:{(m & 1)*2048 + (kb & 1)*1024}{SCS}")

    WROW = 7168; REG_OFF = 64 * 224; SLOT = 2 * REG_OFF
    uacc = [[R_("v", 32 + (m * 14 + T) * 4, 4) for T in range(14)] for m in range(4)]
    ringU = [[R_("a", (r * 4 + m) * 4, 4) for m in range(4)] for r in range(4)]
    wfU = [R_("a", 64 + 4 * i, 4) for i in range(8)]
    vdma = GA.sub(0, 7); vtrU = GA.sub(7, 3)
    def ku_setup_w():
        P.e(f"s_and_b32 {st0}, {swave}, 1\ns_mul_i32 {st0}, {st0}, 448\ns_mul_i32 {st1}, {smem}, 224\ns_and_b32 {st2}, {smem}, 1\ns_lshl_b32 {st2}, {st2}, 1")
        for t in range(7):
            P.e(f"v_add_u32 {vtmp[0]}, {st0}, {vlane}")
            if t: P.e(f"v_add_u32 {vtmp[0]}, {64*t}, {vtmp[0]}")
            P.e(f"v_mul_u32_u24 {vtmp[1]}, 4682, {vtmp[0]}\nv_lshrrev_b32 {vtmp[1]}, 16, {vtmp[1]}")
            P.e(f"v_mul_u32_u24 {vtmp[2]}, 14, {vtmp[1]}\nv_sub_u32 {vtmp[2]}, {vtmp[0]}, {vtmp[2]}")
            P.e(f"v_add_u32 {vtmp[2]}, {st2}, {vtmp[2]}\nv_subrev_u32 {vtmp[3]}, 14, {vtmp[2]}\nv_cmp_gt_u32 vcc, 14, {vtmp[2]}\nv_cndmask_b32 {vtmp[2]}, {vtmp[3]}, {vtmp[2]}, vcc")
            P.e(f"v_mul_u32_u24 {vtmp[1]}, {WROW}, {vtmp[1]}\nv_lshlrev_b32 {vtmp[2]}, 4, {vtmp[2]}")
            P.e(f"v_add3_u32 {vdma[t]}, {vtmp[1]}, {vtmp[2]}, {st1}")
        P.e(f"s_lshr_b32 {st0}, {swave}, 1\ns_mul_i32 {st0}, {st0}, {REG_OFF}\ns_and_b32 {st1}, {swave}, 1\ns_mul_i32 {st1}, {st1}, 7168\ns_add_u32 {sLds}, {st0}, {st1}")
        P.e(f"v_lshrrev_b32 {vtmp[0]}, 2, {vlane}\nv_mul_u32_u24 {vtrU[0]}, 224, {vtmp[0]}\nv_and_b32 {vtmp[0]}, 3, {vlane}\nv_lshlrev_b32 {vtmp[0]}, 3, {vtmp[0]}")
        P.e(f"v_add_u32 {vtrU[0]}, {vtrU[0]}, {vtmp[0]}\nv_add_u32 {vtrU[1]}, {2*SLOT}, {vtrU[0]}")
        P.e(f"s_cmp_ge_u32 {swave}, 2\ns_cselect_b32 {srdW[0]}, {ptr['wu'][0]}, {ptr['wg'][0]}\ns_cselect_b32 {srdW[1]}, {ptr['wu'][1]}, {ptr['wg'][1]}")
        P.e(f"s_mov_b32 {srdW[2]}, {1024*WROW}\ns_mov_b32 {srdW[3]}, 0x20000\ns_mov_b32 {sWoff}, 0")
    def ku_dma_pre(stage, t):
        if t == 0 and stage > 0: P.e(f"s_add_u32 {sWoff}, {sWoff}, {64*WROW}")
        P.e(f"s_add_u32 m0, {sLds}, {(stage % 4)*SLOT + t*1024}")
    def ku_dma(stage, t): return P.e(f"buffer_load_dwordx4 {vdma[t]}, {srdW}, {sWoff} offen lds")
    def ku_act(g, m):
        return P.e(f"buffer_load_dwordx4 {ringU[g % 4][m]}, {vact[m >> 1]}, {srdA}, {sAoff} offen offset:{(m & 1)*2048 + (g & 1)*1024}{SCL}")
    def ku_tr(G, T, rd, dst):
        stage, q = divmod(G, 2); slot = stage % 4
        off = (slot & 1) * SLOT + (T & 1) * REG_OFF + (32 * q + 16 * rd) * 224 + 32 * (T >> 1)
        return P.e(f"ds_read_b64_tr_b16 {dst}, {vtrU[slot >> 1]} offset:{off}")
    CU = GemmCore(P, "u", 4, 14, 16, 4, 4, uacc, ringU, wfU, 7, ku_dma, ku_act, ku_tr, scnt, U=4, dahead=o["dahead"], wgroup=o["wgroup"], LA=o["LA"],
                  dma_pre=ku_dma_pre, act_pre=lambda g, m: P.e(f"s_add_u32 {sAoff}, {sAoff}, 262144"), act_needs_pre=lambda g, m: m == 0 and g > 0 and (g & 1) == 0)
    CU.setup_w = ku_setup_w
    def ku_setup_a():
        make_srd(P, srdA, ptr["ws"], 4 * MB, WS_H2); P.e(f"s_mov_b32 {sAoff}, 0")
    CU.setup_a = ku_setup_a
    def ku_epilogue():
        make_srd(P, srd2, ptr["ws"], 2048 * 3584 * 2, WS_ACT)
        tmp = R_("v", 20, 8)
        par = sp[0]; sT = sp[1]; so_ = sp[2]
        P.e(f"s_and_b32 {par}, {smem}, 1\ns_mul_i32 {sT}, {smem}, 7\ns_add_u32 {sT}, {sT}, {par}\ns_lshr_b32 {sT}, {sT}, 1")
        def silu(m, t, dst2):
            Gt, Ut = uacc[m][2 * t], uacc[m][2 * t + 1]
            for j in range(4): P.e(f"v_exp_f32_e64 {tmp[j]}, -{Gt[j]}")
            for j in range(2): P.e(f"v_pk_mul_f32 {Gt.sub(2*j,2)}, {Gt.sub(2*j,2)}, {Ut.sub(2*j,2)}")
            for j in range(2): P.e(f"v_pk_add_f32 {tmp.sub(2*j,2)}, {tmp.sub(2*j,2)}, 1.0 op_sel_hi:[1,0]")
            for j in range(4): P.e(f"v_rcp_f32 {tmp[j]}, {tmp[j]}")
            P.e("s_nop 0")
            for j in range(2): P.e(f"v_pk_mul_f32 {Gt.sub(2*j,2)}, {Gt.sub(2*j,2)}, {tmp.sub(2*j,2)}")
            for j in range(2): P.e(f"v_cvt_pk_bf16_f32 {dst2[j]}, {Gt[2*j]}, {Gt[2*j+1]}")
        for j in range(3):
            P.e(f"s_add_u32 {st0}, {sT}, {j}\ns_lshr_b32 {so_}, {st0}, 1\ns_lshl_b32 {so_}, {so_}, 18\ns_and_b32 {st0}, {st0}, 1\ns_lshl_b32 {st0}, {st0}, 10\ns_add_u32 {so_}, {so_}, {st0}")
            for m in range(4):
                D = uacc[m][4 * j + 1]
                silu(m, 2 * j, D.sub(0, 2))
                silu(m, 2 * j + 1, D.sub(2, 2))
                P.e(f"buffer_store_dwordx4 {D}, {vact[m >> 1]}, {srd2}, {so_} offen offset:{(m & 1)*2048}{SCS}")
        P.e(f"s_mul_i32 {st0}, {smem}, 7\ns_add_u32 {st1}, {st0}, 6\ns_cmp_eq_u32 {par}, 0\ns_cselect_b32 {st0}, {st1}, {st0}")
        P.e(f"s_lshr_b32 {st1}, {st0}, 2\ns_lshl_b32 {so_}, {st1}, 18\ns_bfe_u32 {st1}, {st0}, 0x10001\ns_lshl_b32 {st1}, {st1}, 10\ns_add_u32 {so_}, {so_}, {st1}\ns_and_b32 {st0}, {st0}, 1\ns_lshl_b32 {st0}, {st0}, 3\ns_add_u32 {so_}, {so_}, {st0}")
        for m in range(4):
            D = uacc[m][13]
            silu(m, 6, D.sub(0, 2))
            P.e(f"buffer_store_dwordx2 {D.sub(0,2)}, {vact[m >> 1]}, {srd2}, {so_} offen offset:{(m & 1)*2048}{SCS}")

    def qa_phase(sync_in):
        va = Alloc("v", 20, 32)
        vdKV = va.get(); vkr = va.get(2); vvr = va.get(2); vor = va.get(); vx = R_("v", 52, 4); et = R_("v", 56, 8)
        negm = [R_("v", 32 + 4 * m, 4) for m in range(4)]; ones = R_("v", 48, 4)
        S = [[[R_("v", 64 + b * 64 + (kt * 4 + m) * 4, 4) for m in range(4)] for kt in range(4)] for b in range(2)]
        Pb = [[[R_("v", 192 + b * 32 + (ks * 4 + m) * 4, 4) for m in range(4)] for ks in range(2)] for b in range(2)]
        O = [[R_("a", (dt * 4 + m) * 4, 4) for m in range(4)] for dt in range(8)]
        Q = [[R_("a", 128 + (m * 4 + s_) * 4, 4) for s_ in range(4)] for m in range(4)]
        lac = [R_("a", 192 + 4 * m, 4) for m in range(4)]
        kfr = [R_("a", 208 + 4 * i, 4) for i in range(4)]
        vfr = [R_("a", 224 + 4 * i, 4) for i in range(8)]
        srdK, srdV, srdO = srd2, srd3, srd4
        sKoff, sVoff, sKm, sVm, sKc, sVc = sp[0], sp[1], sp[2], sp[3], sp[4], sp[5]
        def kv_setup():
            P.e(f"v_lshrrev_b32 {vtmp[0]}, 4, {vlane}\nv_lshlrev_b32 {vtmp[1]}, 12, {vtmp[0]}\nv_and_b32 {vtmp[2]}, 15, {vlane}\nv_lshlrev_b32 {vtmp[2]}, 4, {vtmp[2]}\nv_add_u32 {vdKV}, {vtmp[1]}, {vtmp[2]}")
            P.e(f"s_mul_i32 {sKm}, {swave}, {4*1040}\ns_mul_i32 {sVm}, {swave}, {4*1056}\ns_add_u32 {sVm}, {sVm}, {W_BASE}")
            P.e(f"s_lshl_b32 {sKc}, {sKm}, 1\ns_add_u32 {sKc}, {sKc}, {2*KSL}\ns_lshl_b32 {sVc}, {sVm}, 1\ns_add_u32 {sVc}, {sVc}, {2*VSL}")
            P.e(f"s_lshr_b32 {st0}, {smem}, 3\ns_lshl_b32 {st0}, {st0}, 11\ns_lshl_b32 {st1}, {swave}, 2\ns_add_u32 {st0}, {st0}, {st1}\ns_add_u32 {st0}, {st0}, 1536\ns_lshl_b32 {sKoff}, {st0}, 8\ns_mov_b32 {sVoff}, {sKoff}")
            P.e(f"v_lshrrev_b32 {vtmp[0]}, 2, {vlane}\nv_mul_u32_u24 {vvr[0]}, 1056, {vtmp[0]}\nv_and_b32 {vtmp[0]}, 3, {vlane}\nv_lshlrev_b32 {vtmp[0]}, 3, {vtmp[0]}\nv_add_u32 {vvr[0]}, {vvr[0]}, {vtmp[0]}")
            P.e(f"v_add_u32 {vvr[0]}, {W_BASE}, {vvr[0]}\nv_add_u32 {vvr[1]}, {2*VSL}, {vvr[0]}")
            P.e(f"v_and_b32 {vtmp[0]}, 15, {vlane}\nv_mul_u32_u24 {vkr[1]}, 1040, {vtmp[0]}\nv_lshrrev_b32 {vtmp[0]}, 4, {vlane}\nv_lshlrev_b32 {vtmp[0]}, 3, {vtmp[0]}\nv_add_u32 {vkr[1]}, {vkr[1]}, {vtmp[0]}\nv_add_u32 {vkr[0]}, {2*KSL}, {vkr[1]}")
            make_srd(P, srdK, ptr["kc"], 4 * 2048 * 256); make_srd(P, srdV, ptr["vc"], 4 * 2048 * 256)
            P.e(f"s_lshr_b32 {st0}, {smem}, 3\ns_add_u32 {st0}, {st0}, 1\ns_lshl_b32 {srdK[2]}, {st0}, 19\ns_mov_b32 {srdV[2]}, {srdK[2]}")
            make_srd(P, srdO, ptr["ws"], 2048 * 4096 * 2, WS_O)
        ktok = {}; vtok = {}
        def kdma_pre(c_, i):
            if c_ > 0 or i > 0: P.e(f"s_add_u32 {sKoff}, {sKoff}, {256 if i > 0 else (64 - 3)*256}")
            if i == 0 and c_ > 0 and c_ % 2 == 0: P.e(f"s_sub_u32 {sKm}, {sKc}, {sKm}")
            P.e(f"s_add_u32 m0, {sKm}, {(c_ & 1)*KSL + i*1040}")
        def kdma(c_, i): ktok.setdefault(c_, []).append(P.e(f"buffer_load_dwordx4 {vdKV}, {srdK}, {sKoff} offen lds"))
        def vdma_pre(c_, i):
            if c_ > 0 or i > 0: P.e(f"s_add_u32 {sVoff}, {sVoff}, {256 if i > 0 else (64 - 3)*256}")
            if i == 0 and c_ > 0 and c_ % 2 == 0: P.e(f"s_sub_u32 {sVm}, {sVc}, {sVm}")
            P.e(f"s_add_u32 m0, {sVm}, {(c_ & 1)*VSL + i*1056}")
        def vdma(c_, i): vtok.setdefault(c_, []).append(P.e(f"buffer_load_dwordx4 {vdKV}, {srdV}, {sVoff} offen lds"))
        pair = {"k": 1, "v": 0}
        kv_setup()
        extras = {}
        zl = [f"v_accvgpr_write_b32 {O[dt][m][r]}, 0" for dt in range(8) for m in range(4) for r in range(4)]
        for k_, G in enumerate(range(24, 32)):
            extras[G] = [(2 * j, z) for j, z in enumerate(zl[16 * k_:16 * k_ + 16])]
        for c_ in range(3):
            G = 24 + 2 * c_
            for i in range(4):
                extras[G].append((4 + 7 * i, (lambda c_=c_, i=i: kdma_pre(c_, i)))); extras[G].append((5 + 7 * i, (lambda c_=c_, i=i: kdma(c_, i))))
            extras[G].sort(key=lambda t: t[0])
        CQ.extras = extras
        pre_gemm(CQ, qacc)
        sync_in()
        run_gemm(CQ, qacc, 0)
        stamp('Qgemm')
        for m in range(4):
            for s_ in range(4):
                for hf in range(2):
                    A = qacc[m][2 * s_ + hf]
                    P.e(f"v_cvt_pk_bf16_f32 {et[2*hf]}, {A[0]}, {A[1]}\nv_cvt_pk_bf16_f32 {et[2*hf+1]}, {A[2]}, {A[3]}")
                for j in range(4): P.e(f"v_accvgpr_write_b32 {Q[m][s_][j]}, {et[j]}")
        for m in range(4):
            for r in range(4): P.e(f"v_mov_b32 {negm[m][r]}, 0\nv_accvgpr_write_b32 {lac[m][r]}, 0")
        for r in range(4): P.e(f"v_mov_b32 {ones[r]}, 0x3f803f80")
        P.wait(vm=ktok[0] + ktok[1], lg0=True); P.e("s_barrier")
        kf_tok = {}; vf_tok = {}
        def kread(c_, f, p):
            kt, s_ = divmod(f, 4)
            off = (c_ & 1) * KSL + kt * 256 + 64 * s_ + 32 * p
            reg = vkr[0] if ((c_ >> 1) & 1) == pair["k"] else vkr[1]
            kf_tok.setdefault((c_, f), []).append(P.e(f"ds_read_b64 {kfr[f % 4].sub(2*p, 2)}, {reg} offset:{off}"))
        def vread(c_, f, rd):
            ks, dt = divmod(f, 8)
            off = (c_ & 1) * VSL + (2 * ks + rd) * 256 + 32 * dt
            reg = vvr[0] if ((c_ >> 1) & 1) == pair["v"] else vvr[1]
            vf_tok.setdefault((c_, f), []).append(P.e(f"ds_read_b64_tr_b16 {vfr[f % 8].sub(2*rd, 2)}, {reg} offset:{off}"))
        KLA = 3; VLA = 6
        def qk_mfmas(c_):
            out = []; b = c_ & 1
            for f in range(16):
                kt, s_ = divmod(f, 4)
                ms = range(4) if f % 2 == 0 else range(3, -1, -1)
                for j, m in enumerate(ms):
                    cin = negm[m] if s_ == 0 else S[b][kt][m]
                    out.append((f"v_mfma_f32_16x16x32_bf16 {S[b][kt][m]}, {kfr[f % 4]}, {Q[m][s_]}, {cin}", ("k", c_, f) if j == 0 else None))
            return out
        def pv_mfmas(c_):
            out = []; b = c_ & 1
            for ks in range(2):
                for dt in range(8):
                    f = ks * 8 + dt
                    ms = range(4) if f % 2 == 0 else range(3, -1, -1)
                    for j, m in enumerate(ms):
                        out.append((f"v_mfma_f32_16x16x32_bf16 {O[dt][m]}, {vfr[f % 8]}, {Pb[b][ks][m]}, {O[dt][m]}", ("v", c_, f) if j == 0 else None))
                for m in range(4):
                    out.append((f"v_mfma_f32_16x16x32_bf16 {lac[m]}, {ones}, {Pb[b][ks][m]}, {lac[m]}", None))
            return out
        def softmax_ops(c_):
            b = c_ & 1; ops = []; t = 0; first = True
            for ks in range(2):
                for m in range(4):
                    for hf in range(2):
                        Sx = S[b][2 * ks + hf][m]; Px = Pb[b][ks][m]
                        e = [et[(t + j) % 8] for j in range(4)]; t += 4
                        ops += [f"v_exp_f32 {e[0]}, {Sx[0]}", f"v_exp_f32 {e[1]}, {Sx[1]}", f"v_exp_f32 {e[2]}, {Sx[2]}",
                                f"v_cvt_pk_bf16_f32 {Px[2*hf]}, {e[0]}, {e[1]}", f"v_exp_f32 {e[3]}, {Sx[3]}"]
                        ops.append(("late", f"v_cvt_pk_bf16_f32 {Px[2*hf+1]}, {e[2]}, {e[3]}"))
                        if hf == 1:
                            if first: ops.append(("late", f"v_or_b32 {vor}, {Px[0]}, {Px[1]}")); first = False
                            else: ops.append(("late", f"v_or3_b32 {vor}, {vor}, {Px[0]}, {Px[1]}"))
                            ops.append(("late", f"v_or3_b32 {vor}, {vor}, {Px[2]}, {Px[3]}"))
            out = []; pend = []
            for o_ in ops:
                if isinstance(o_, tuple): pend.append(o_[1])
                else:
                    out.append(o_)
                    if pend: out += pend; pend = []
            return out + pend
        def cost(x):
            if callable(x): return 4
            return 8 if x.startswith("v_exp") else 4
        def iteration(i, do_qk, do_pv, do_sm, kd=None, vd=None, bar=True, tail=False, extra_vm=()):
            mf = []
            if do_qk: mf += qk_mfmas(i + 1)
            if do_pv: mf += pv_mfmas(i - 1)
            nm = len(mf)
            gaps = [[] for _ in range(nm)]; pre = [[] for _ in range(nm)]
            for idx, (txt, tag) in enumerate(mf):
                if tag is None: continue
                kind, c_, f = tag
                if kind == "k":
                    if f % 2 == 0: pre[idx].append(lambda c_=c_, f=f: P.wait(lg=kf_tok[(c_, f + 1)]) if True else None)
                    fn = f + KLA
                    if fn < 16:
                        gaps[idx].append(lambda c_=c_, fn=fn: kread(c_, fn, 0)); gaps[idx + 1].append(lambda c_=c_, fn=fn: kread(c_, fn, 1))
                    if do_pv and f >= 13:
                        for u in range(2):
                            vf = (f - 13) * 2 + u
                            gaps[idx + 2].append(lambda vf=vf: vread(i - 1, vf, 0)) if u == 0 else gaps[idx + 3].append(lambda vf=vf: vread(i - 1, vf, 0))
                            gaps[idx + 2].append(lambda vf=vf: vread(i - 1, vf, 1)) if u == 0 else gaps[idx + 3].append(lambda vf=vf: vread(i - 1, vf, 1))
                else:
                    if f % 2 == 0: pre[idx].append(lambda c_=c_, f=f: P.wait(lg=vf_tok[(c_, min(f + 1, 15))]))
                    fn = f + VLA
                    if fn < 16:
                        gaps[idx].append(lambda c_=c_, fn=fn: vread(c_, fn, 0)); gaps[idx + 1].append(lambda c_=c_, fn=fn: vread(c_, fn, 1))
            if bar:
                bpos = nm - 10
                def dobar():
                    tk = []
                    if not tail: tk += ktok[i + 2]
                    if i in vtok: tk += vtok[i]
                    P.wait(vm=tk); P.e("s_barrier")
                pre[bpos].append(dobar)
                if not tail:
                    for f in range(KLA):
                        gaps[bpos + 3 * f].append(lambda f=f: kread(i + 2, f, 0)); gaps[bpos + 3 * f + 1].append(lambda f=f: kread(i + 2, f, 1))
                else:
                    for f in range(VLA):
                        gaps[bpos + f].append(lambda f=f: (vread(i, f, 0), vread(i, f, 1)))
            dl = []
            if kd is not None:
                for u in range(4): dl.append((lambda u=u: kdma_pre(kd, u), lambda u=u: kdma(kd, u)))
            if vd is not None:
                for u in range(4): dl.append((lambda u=u: vdma_pre(vd, u), lambda u=u: vdma(vd, u)))
            for x in extra_vm: dl.append(x)
            for k_, (a_, b_) in enumerate(dl):
                pos = 6 + (k_ * (nm - 30)) // max(1, len(dl))
                if a_: gaps[pos].append(a_)
                gaps[pos + 1].append(b_)
            if do_sm:
                ops = softmax_ops(i)
                fixed = [sum(cost(x) for x in gaps[g]) + 4 * len(pre[g]) for g in range(nm)]
                tot = sum(fixed) + sum(cost(x) for x in ops)
                per = tot / (nm - 1)
                acc_ = 0.0; k_ = 0
                for g in range(nm - 1):
                    acc_ += per - fixed[g]
                    while k_ < len(ops) and acc_ >= cost(ops[k_]) - 2:
                        gaps[g].append(ops[k_]); acc_ -= cost(ops[k_]); k_ += 1
                while k_ < len(ops): gaps[nm - 2].append(ops[k_]); k_ += 1
            do = lambda x: x() if callable(x) else P.e(x)
            for idx, (txt, tag) in enumerate(mf):
                for x in pre[idx]: do(x)
                P.e(txt)
                for x in gaps[idx]: do(x)
        def check(b, tag):
            P.e(f"v_and_b32 {vx[0]}, 0x40004000, {vor}\nv_cmp_ne_u32 vcc, 0, {vx[0]}")
            P.e(f"s_cbranch_vccz L_back{tag}_{name}\ns_call_b64 {sret}, L_rare{b}_{name}\nL_back{tag}_{name}:")
        def allmax4(reg, t):
            P.e(f"v_mov_b32 {t}, {reg}\ns_nop 1\nv_permlane32_swap_b32 {reg}, {t}\ns_nop 1\nv_max_f32 {reg}, {reg}, {t}")
            P.e(f"v_mov_b32 {t}, {reg}\ns_nop 1\nv_permlane16_swap_b32 {reg}, {t}\ns_nop 1\nv_max_f32 {reg}, {reg}, {t}")
        def rescale(b, first):
            P.e("s_nop 15")
            for m in range(4):
                d, t, sc = vx[0], vx[1], vx[2]
                vals = [S[b][kt][m][r] for kt in range(4) for r in range(4)]
                P.e(f"v_max3_f32 {d}, {vals[0]}, {vals[1]}, {vals[2]}")
                for j in range(3, 15, 2): P.e(f"v_max3_f32 {d}, {d}, {vals[j]}, {vals[j+1]}")
                P.e(f"v_max_f32 {d}, {d}, {vals[15]}")
                allmax4(d, t)
                P.e(f"v_add_f32 {d}, {f2u(QBIAS):#x}, {d}")
                if not first: P.e(f"v_max_f32 {d}, 0, {d}")
                for kt in range(4):
                    for r in range(4):
                        P.e(f"v_sub_f32 {S[b][kt][m][r]}, {S[b][kt][m][r]}, {d}")
                        if not first: P.e(f"v_sub_f32 {S[1-b][kt][m][r]}, {S[1-b][kt][m][r]}, {d}")
                for r in range(4): P.e(f"v_sub_f32 {negm[m][r]}, {negm[m][r]}, {d}")
                if not first:
                    P.e(f"v_sub_f32 {sc}, 0, {d}\nv_exp_f32 {sc}, {sc}\ns_nop 0")
                    for A in [O[dt][m] for dt in range(8)] + [lac[m]]:
                        for r in range(4):
                            P.e(f"v_accvgpr_read_b32 {t}, {A[r]}\ns_nop 0\nv_mul_f32 {t}, {t}, {sc}\nv_accvgpr_write_b32 {A[r]}, {t}")
            if not first:
                for o_ in softmax_ops(b): P.e(o_)
                P.e("s_nop 1")
        def rare():
            for b in range(2):
                P.e(f"L_rare{b}_{name}:"); rescale(b, False); P.e(f"s_setpc_b64 {sret}")
        for f in range(KLA): kread(0, f, 0); kread(0, f, 1)
        vq = [(0, u) for u in range(4)]
        for idx, (txt, tag) in enumerate(qk_mfmas(0)):
            if tag: P.wait(lg=kf_tok[(0, tag[2])])
            P.e(txt)
            if tag and tag[2] + KLA < 16: kread(0, tag[2] + KLA, 0); kread(0, tag[2] + KLA, 1)
            if idx % 8 == 5 and vq:
                c_, u = vq.pop(0); vdma_pre(c_, u); P.e("s_nop 0"); vdma(c_, u)
        for f in range(KLA): kread(1, f, 0); kread(1, f, 1)
        rescale(0, True)
        P.e("s_barrier")
        srdT = srd5; sT = sp[6]; vta, vtd = vtmp[2], vtmp[3]
        WB = 1024 * 7168
        def t_setup():
            P.e(f"s_lshl_b32 {sT}, s2, 2\ns_add_u32 {sT}, {sT}, {swave}\ns_lshl_b32 {sT}, {sT}, 13\nv_lshlrev_b32 {vta}, 7, {vlane}\ns_mov_b32 {srdT[3]}, 0x20000")
        def t_issue(): P.e(f"buffer_load_dword {vtd}, {vta}, {srdT}, {sT} offen")
        def t_static(key, nb):
            return (lambda: P.e(f"s_mov_b32 {srdT[0]}, {ptr[key][0]}\ns_mov_b32 {srdT[1]}, {ptr[key][1]}\ns_mov_b32 {srdT[2]}, {nb}"), t_issue)
        def t_a():
            P.e(f"s_cmp_eq_u32 {scnt}, 3\ns_cselect_b32 {srdT[0]}, {ptr['wg'][0]}, {ptr['wd'][0]}\ns_cselect_b32 {srdT[1]}, {ptr['wg'][1]}, {ptr['wd'][1]}\ns_cmp_eq_u32 {scnt}, 1\ns_cselect_b32 {srdT[2]}, 0, {WB}")
        def t_b():
            P.e(f"s_mov_b32 {srdT[0]}, {ptr['wu'][0]}\ns_mov_b32 {srdT[1]}, {ptr['wu'][1]}\ns_cmp_eq_u32 {scnt}, 3\ns_cselect_b32 {srdT[2]}, {WB}, 0")
        tch = o["touch"]
        if tch: t_setup()
        stamp('qk0')
        iteration(0, True, False, True, kd=3, vd=1, extra_vm=[t_static("wo", 8 * MB)] if tch else ()); check(0, "p")
        def body(it):
            i = 1 + 2 * it
            iteration(i, True, True, True, kd=i + 3, vd=i + 1, extra_vm=[(t_a, t_issue)] if tch else ()); check(1, "a")
            iteration(i + 1, True, True, True, kd=i + 4, vd=i + 2, extra_vm=[(t_b, t_issue)] if tch else ()); check(0, "b")
            P.e(f"v_swap_b32 {vkr[0]}, {vkr[1]}\nv_swap_b32 {vvr[0]}, {vvr[1]}")
            pair["k"] ^= 1; pair["v"] ^= 1
        P.loop(f"L_loop_attn", 3, body, scnt)
        stamp('loop')
        for f in range(VLA): vread(6, f, 0); vread(6, f, 1)
        iteration(7, False, True, True, tail=True); check(1, "c")
        iteration(8, False, True, False, bar=False)
        stamp('attn')
        P.e(f"s_lshl_b32 {st0}, {smem}, 19\ns_nop 7")
        for m in range(4):
            rl = vx[0]
            P.e(f"v_accvgpr_read_b32 {rl}, {lac[m][0]}\ns_nop 0\nv_rcp_f32 {rl}, {rl}")
            for kb in range(4):
                tt = [R_("v", 64 + ((m * 4 + kb) % 8) * 8 + j) for j in range(8)]
                for hf in range(2):
                    for r in range(4): P.e(f"v_accvgpr_read_b32 {tt[4*hf+r]}, {O[2*kb+hf][m][r]}")
                for j in range(4): P.e(f"v_pk_mul_f32 v[{tt[2*j].base}:{tt[2*j].base+1}], v[{tt[2*j].base}:{tt[2*j].base+1}], {vx.sub(0,2)} op_sel_hi:[1,0]")
                for j in range(4): P.e(f"v_cvt_pk_bf16_f32 {tt[j]}, {tt[2*j]}, {tt[2*j+1]}")
                P.e(f"s_add_u32 {st1}, {st0}, {(kb >> 1)*262144}")
                P.e(f"buffer_store_dwordx4 {R_('v', tt[0].base, 4)}, {vact[m >> 1]}, {srdO}, {st1} offen offset:{(m & 1)*2048 + (kb & 1)*1024}{SCS}")
        return rare

    rows_phase("ln1")
    stamp("ln1")
    signal(PH_LN1)
    CQ.setup_w(); CQ.pre_w(o["dahead"])
    if o["touch"]: touch("wq", 8 * MB, 1, srd4, vtmp)
    rare = qa_phase(lambda: (wait(PH_LN1, 32), stamp("sync1")))
    stamp("qaepi")
    P.e(f"s_lshr_b32 {sp[10]}, {smem}, 3")
    signal(PH_QA, sp[10])
    stamp("sigQA")
    CO.setup_w(); CO.pre_w(o["dahead"]); pre_gemm(CO, pacc)
    P.e(f"s_lshr_b32 {sp[10]}, {sx}, 1")
    wait(PH_QA, 8, sp[10])
    stamp("syncQA")
    run_gemm(CO, pacc, 0)
    stamp("Omain")
    proj_epilogue(WS_PO)
    signal(PH_O)
    stamp("sigO")
    def ln2_pre():
        wait(PH_O, 32)
        stamp("syncO")
    rows_phase("ln2", pre_sync=ln2_pre)
    stamp("ln2")
    signal(PH_LN2)
    stamp("sigLN2")
    CU.setup_w(); CU.pre_w(o["dahead"]); pre_gemm(CU, uacc)
    wait(PH_LN2, 32)
    stamp("syncLN2")
    run_gemm(CU, uacc, 0)
    stamp("KUmain")
    P.e("s_nop 7")
    ku_epilogue()
    stamp("KUepi")
    P.e(f"s_lshr_b32 {sp[10]}, {smem}, 3")
    signal(PH_KU, sp[10])
    stamp("sigKU")
    CD.setup_w(); CD.pre_w(o["dahead"]); pre_gemm(CD, pacc)
    P.e(f"s_lshr_b32 {sp[10]}, {sx}, 1")
    wait(PH_KU, 8, sp[10])
    stamp("syncKU")
    run_gemm(CD, pacc, 0)
    stamp("Dmain")
    proj_epilogue(WS_PD)
    signal(PH_D)
    stamp("sigD")
    rows_phase("fin", pre_sync=lambda: (wait(PH_D, 32), stamp("syncD")))
    if ts:
        P.e("s_waitcnt vmcnt(0)"); stamp("end")
    P.e("s_endpgm")
    rare()
    P.e(f"L_end_{name}:\ns_endpgm")
    lines, nfix = fix_hazards(P.lines()); check_m0(lines)
    gen_mega.names = names
    return name, lines, 256, 256, 102, LDS_TOTAL
```
